```python
import torch

def _softmax(x, axis=-1):
    return torch.softmax(x, dim=axis)
def _gelu(x):
    return torch.nn.functional.gelu(x, approximate="tanh")
def _silu(x):
    return torch.nn.functional.silu(x)
def _sigmoid(x):
    return torch.sigmoid(x)
def _layernorm(x, axis=-1, eps=1e-5):
    m = x.mean(dim=axis, keepdim=True)
    v = x.var(dim=axis, keepdim=True, unbiased=False)
    return (x - m) / torch.sqrt(v + eps)
def _scatter_add(tgt, idx, src, axis=0):
    return tgt.clone().index_add_(axis, idx, src)
def _segment_sum(src, seg, n):
    out = torch.zeros((n,) + src.shape[1:], dtype=src.dtype)
    return out.index_add_(0, seg, src)
def _pad(x, pw):
    flat = tuple(v for pair in reversed(pw) for v in pair)
    return torch.nn.functional.pad(x, flat)

kernel_name = 'interleave_layers__linear_attn_block__dense_activation_silu__prompt'

def setup_inputs():

    _w = (lambda a: (lambda t: t.to(torch.bfloat16) if t.is_floating_point() else t)(torch.as_tensor(a)))
    def _A_setup():
        B, S, D = 1, 2048, 1024
        return {
            "x": _w((lambda *s: torch.randn(*s, dtype=torch.bfloat16) * 0.05)(B, S, D)),
            "wqkv": _w((lambda *s: torch.randn(*s, dtype=torch.bfloat16) * 0.05)(D, 3 * D)),
            "wo": _w((lambda *s: torch.randn(*s, dtype=torch.bfloat16) * 0.05)(D, D)),
        }
    _A_in = _A_setup()

    def _B_setup():
        B, S, D, F = 1, 2048, 1024, 3584
        return {
            "x": _w((lambda *s: torch.randn(*s, dtype=torch.bfloat16) * 0.05)(B, S, D)),
            "w1": _w((lambda *s: torch.randn(*s, dtype=torch.bfloat16) * 3.2)(D, F) * (D ** -0.5)),
            "w2": _w((lambda *s: torch.randn(*s, dtype=torch.bfloat16) * 0.8)(F, D) * (F ** -0.5)),
        }
    _B_in = _B_setup()

    return {
        "A_x": _A_in["x"],
        "A_wqkv": _A_in["wqkv"],
        "A_wo": _A_in["wo"],
        "B_x": _B_in["x"],
        "B_w1": _B_in["w1"],
        "B_w2": _B_in["w2"],
    }

def reference(A_x, A_wqkv, A_wo, B_x, B_w1, B_w2):
    def _A_ref(x, wqkv, wo):
        B, S, D = x.shape
        H = 32; Dh = D // H
        qkv = (lambda x, *d: x.permute(*d))((x @ wqkv).reshape(B, S, 3, H, Dh), 2, 0, 3, 1, 4)
        q, k, v = qkv[0], qkv[1], qkv[2]
        phi = lambda t: torch.where(t > 0, t + 1, torch.exp(t)) + 1e-6
        pq, pk = phi(q), phi(k)
        kv = torch.einsum("bhsd,bhse->bhde", pk, v)
        z = torch.einsum("bhsd->bhd", pk)
        num = torch.einsum("bhqd,bhde->bhqe", pq, kv)
        den = torch.einsum("bhqd,bhd->bhq", pq, z)[..., None] + 1e-6
        o = num / den
        return (lambda x, *d: x.permute(*d))(o, 0, 2, 1, 3).reshape(B, S, D) @ wo

    def _B_ref(x, w1, w2):
        h = torch.einsum("bsd,df->bsf", x, w1)
        h = _silu(h)
        out = torch.einsum("bsf,fd->bsd", h, w2)
        return out

    x = A_x
    x = x + _A_ref(_layernorm(x, axis=-1), A_wqkv, A_wo)
    x = x + _B_ref(_layernorm(x, axis=-1), B_w1, B_w2)
    x = x + _A_ref(_layernorm(x, axis=-1), A_wqkv, A_wo)
    x = x + _B_ref(_layernorm(x, axis=-1), B_w1, B_w2)
    return x
```

```python
import sys, math, struct

NAME = "interleave_layers__linear_attn_block__dense_activation_silu__prompt"
S_ROWS, D, F = 2048, 1024, 3584

WS_PQ   = [0x0000000, 0x0400000]
WS_O    = [0x0800000, 0x0C00000]
WS_X1   = [0x1000000, 0x1400000]
WS_X2   = 0x1800000
WS_H    = [0x2000000, 0x3000000]
WS_KVP  = [0x4000000, 0x4400000]
WS_STAT = [0x4800000 + n * 0x40000 for n in range(4)]
WS_CSQ  = 0x4900000
WS_CSW  = 0x4910000
KVREC   = 4224
NCP     = 4
XBYTES  = S_ROWS * D * 2
HBYTES  = S_ROWS * F * 2
STATBYTES = 16 * S_ROWS * 8

LOG2E = 0x3fb8aa3b
def f2u(x): return struct.unpack("<I", struct.pack("<f", x))[0]

class Asm:
    def __init__(self):
        self.L = []; self.n = 0
    def e(self, s):
        for ln in s.split("\n"):
            ln = ln.strip()
            if ln: self.L.append(ln if ln.endswith(":") else "  " + ln)
    def lab(self, base):
        self.n += 1
        return f"L_{base}_{self.n}"
    def text(self): return "\n".join(self.L) + "\n"

S_X, S_WQKV, S_WO, S_BX, S_W1, S_W2, S_OUT, S_DBG, S_WS = 4, 6, 8, 10, 12, 14, 16, 18, 20
SRD_X, SRD_W, SRD_O, SRD_R, SRD_S, SRD_T = 24, 28, 32, 36, 40, 44
S_WAVE, S_I, S_J, S_SLOT, S_TMP, S_CNT, S_KX = 48, 49, 50, 51, 52, 53, 54
S_KW = 55
S_T2, S_T3, S_T4 = 59, 60, 61
S_DELTA = 62
S_T5 = 63
S_STRX, S_NT = 64, 65
S_C0, S_C1, S_C2 = 66, 67, 68
S_LX, S_LW = 69, 70
VL = 255
VT = 240

def srd(a, dst, ptr, offs, size):
    first = True
    for off in offs:
        if isinstance(off, int) and off == 0: continue
        src = ptr if first else dst
        a.e(f"s_add_u32 s{dst}, s{src}, {off}\ns_addc_u32 s{dst+1}, s{src+1}, 0")
        first = False
    if first:
        a.e(f"s_mov_b32 s{dst}, s{ptr}\ns_mov_b32 s{dst+1}, s{ptr+1}")
    a.e(f"s_mov_b32 s{dst+2}, {size}\ns_mov_b32 s{dst+3}, 0x00020000")

def load_args(a, done, nwg=256):
    a.e(f"s_cmp_ge_u32 s2, {nwg}\ns_cbranch_scc1 {done}")
    a.e(f"s_load_dwordx16 s[4:19], s[0:1], 0\ns_load_dwordx2 s[20:21], s[0:1], 64")
    a.e(f"v_lshrrev_b32 v1, 6, v0\ns_nop 0\nv_readfirstlane_b32 s{S_WAVE}, v1")
    a.e("s_waitcnt lgkmcnt(0)")

def wg_map(a, mode):
    a.e(f"s_and_b32 s{S_TMP}, s2, 7\ns_lshr_b32 s{S_T2}, s2, 3")
    rb, sh = (1, 3) if mode == "8x4" else (2, 2)
    a.e(f"""s_and_b32 s{S_I}, s{S_TMP}, {(1<<rb)-1}
s_lshl_b32 s{S_I}, s{S_I}, {sh}
s_and_b32 s{S_T3}, s{S_T2}, {(1<<sh)-1}
s_add_u32 s{S_I}, s{S_I}, s{S_T3}
s_lshr_b32 s{S_J}, s{S_TMP}, {rb}
s_lshl_b32 s{S_J}, s{S_J}, {5-sh}
s_lshr_b32 s{S_T3}, s{S_T2}, {sh}
s_add_u32 s{S_J}, s{S_J}, s{S_T3}""")

class Gemm:
    def __init__(self, name, T, strideX, strideW, NP, S, NS, NN, kperm, panel_byte):
        self.name, self.T = name, T
        self.strideX, self.strideW = strideX, strideW
        self.NP, self.S, self.NS, self.NN, self.kperm = NP, S, NS, NN, kperm
        self.panel_byte = panel_byte
        self.STAGE = 16384 + NP * 8192
        self.SCR = S * self.STAGE
        self.PX, self.PW = 4, 2 * NP
        self.P = self.PX + self.PW
        self.ACC = 0
        self.XA = self.ACC + NS * NN * 4
        self.XB = self.XA + NS * 4
        self.WA = self.XB + NS * 4
        self.WB = self.WA + NN * 4
        self.VEND = self.WB + NN * 4

    def loader_addr(self, a):
        sW = self.strideW
        a.e(f"""s_sub_u32 s{S_T4}, s{S_WAVE}, 4
v_and_b32 v1, 63, v0
v_lshrrev_b32 v8, 3, v1
v_and_b32 v9, 7, v1
v_lshrrev_b32 v10, 4, v1
s_lshl_b32 s{S_TMP}, s{S_T4}, 5
v_add_u32 v11, s{S_TMP}, v8""")
        if self.strideX is None:
            a.e(f"v_mul_lo_u32 v11, v11, s{S_STRX}\ns_lshl_b32 s{S_T2}, s{S_STRX}, 3")
        else:
            a.e(f"s_mov_b32 s{S_T2}, {self.strideX}\nv_mul_lo_u32 v11, v11, s{S_T2}\ns_mov_b32 s{S_T2}, {8*self.strideX}")
        for q in range(4):
            fx = (q & 1) << 2
            a.e(f"v_or_b32 v12, {fx}, v10\nv_xor_b32 v12, v12, v9\nv_lshl_add_u32 v{2+q}, v12, 4, v11")
            if q < 3: a.e(f"v_add_u32 v11, s{S_T2}, v11")
        a.e(f"""s_lshl_b32 s{S_TMP}, s{S_T4}, 4
v_add_u32 v11, s{S_TMP}, v8
s_mov_b32 s{S_T2}, {sW}
v_mul_lo_u32 v11, v11, s{S_T2}""")
        for qq in range(2):
            if self.kperm: a.e("v_and_b32 v12, 3, v10")
            else: a.e(f"v_and_b32 v12, 1, v10\nv_or_b32 v12, {qq << 1}, v12")
            a.e(f"v_lshlrev_b32 v12, 1, v12\nv_xor_b32 v12, v12, v9\nv_lshl_add_u32 v{6+qq}, v12, 4, v11")
            if qq == 0: a.e(f"v_add_u32 v11, {8*sW}, v11")
        a.e(f"s_lshl_b32 s{S_LX}, s{S_T4}, 12\ns_lshl_b32 s{S_LW}, s{S_T4}, 11")
        a.e(f"s_mov_b32 s{S_KX}, 0")
        for pn in range(self.NP):
            a.e(f"s_mov_b32 s{S_KW+pn}, {self.panel_byte[pn]}")
        a.e(f"s_mov_b32 s{S_SLOT}, 0")

    def issue_stage(self, a):
        a.e(f"s_add_u32 s{S_TMP}, s{S_SLOT}, s{S_LX}")
        for q in range(4):
            a.e(f"s_add_u32 m0, s{S_TMP}, {q*1024}\ns_nop 0")
            a.e(f"buffer_load_dwordx4 v{2+q}, s[{SRD_X}:{SRD_X+3}], s{S_KX} offen lds")
        a.e(f"s_add_u32 s{S_TMP}, s{S_SLOT}, s{S_LW}")
        for pn in range(self.NP):
            for qq in range(2):
                a.e(f"s_add_u32 m0, s{S_TMP}, {16384 + pn*8192 + qq*1024}\ns_nop 0")
                a.e(f"buffer_load_dwordx4 v{6+qq}, s[{SRD_W}:{SRD_W+3}], s{S_KW+pn} offen lds")
        a.e(f"s_add_u32 s{S_KX}, s{S_KX}, 128")
        for pn in range(self.NP):
            a.e(f"s_add_u32 s{S_KW+pn}, s{S_KW+pn}, {64*self.strideW}")
        a.e(f"""s_add_u32 s{S_SLOT}, s{S_SLOT}, {self.STAGE}
s_cmp_eq_u32 s{S_SLOT}, {self.S*self.STAGE}
s_cselect_b32 s{S_SLOT}, 0, s{S_SLOT}""")

    def loader(self, a, side_issue=None, side_n=0, sideA=None, sideB=None):
        S, P = self.S, self.P
        self.loader_addr(a)
        self.issue_stage(a)
        if side_issue: side_issue(a)
        for st in range(1, S - 1):
            self.issue_stage(a)
        a.e(f"s_waitcnt vmcnt({(S-2)*P + side_n})\ns_barrier")
        for t in range(S - 1):
            self.issue_stage(a)
            a.e(f"s_waitcnt vmcnt({(S-2)*P})\ns_barrier")
            if t == 0 and sideA: sideA(a)
            if t == 1 and sideB: sideB(a)
        lab = a.lab("ld")
        if self.T is None: a.e(f"s_sub_u32 s{S_CNT}, s{S_NT}, {2*S-2}")
        else: a.e(f"s_mov_b32 s{S_CNT}, {self.T - 2*S + 2}")
        a.e(f"{lab}:")
        self.issue_stage(a)
        a.e(f"s_waitcnt vmcnt({(S-2)*P})\ns_barrier")
        a.e(f"s_sub_u32 s{S_CNT}, s{S_CNT}, 1\ns_cmp_lg_u32 s{S_CNT}, 0\ns_cbranch_scc1 {lab}")
        for k in range(S - 1):
            rem = max(0, S - 3 - k)
            a.e(f"s_waitcnt vmcnt({rem*P})\ns_barrier")

    def acc(self, ts, tn): return self.ACC + (ts * self.NN + tn) * 4

    def reads(self, setsel, u, vxa, wtiles):
        X = self.XA if setsel == 0 else self.XB
        W = self.WA if setsel == 0 else self.WB
        r = []
        for ts in range(self.NS):
            r.append(f"ds_read_b128 v[{X+4*ts}:{X+4*ts+3}], v{vxa} offset:{ts*2048}")
        hs = 2048 if self.kperm else 512
        for tn in range(self.NN):
            areg, imm = wtiles[tn]
            for h in range(2):
                r.append(f"ds_read_b64_tr_b16 v[{W+4*tn+2*h}:{W+4*tn+2*h+1}], v{areg} offset:{imm + u*4096 + h*hs}")
        return r

    def mfmas(self, setsel, orient):
        X = self.XA if setsel == 0 else self.XB
        W = self.WA if setsel == 0 else self.WB
        m = []
        for tn in range(self.NN):
            for ts in range(self.NS):
                c = self.acc(ts, tn)
                xs, ws = f"v[{X+4*ts}:{X+4*ts+3}]", f"v[{W+4*tn}:{W+4*tn+3}]"
                A_, B_ = (ws, xs) if orient[tn] == "ns" else (xs, ws)
                m.append(f"v_mfma_f32_16x16x32_bf16 v[{c}:{c+3}], {A_}, {B_}, v[{c}:{c+3}]")
        return m

    @staticmethod
    def interleave(a, mf, rd, frac=0.75, pre=()):
        n = len(mf); span = max(1, int(n * frac))
        k = 0
        pre = list(pre)
        for i, m in enumerate(mf):
            a.e(m)
            if pre and i < len(pre): pass
            while k < len(rd) and (k + 1) * span <= (i + 1) * len(rd):
                a.e(rd[k]); k += 1
        while k < len(rd):
            a.e(rd[k]); k += 1

    def compute_loop(self, a, vx0, vx1, wregs, wtiles, orient, pre_barrier=None):
        S = self.S
        for r in range(self.NS * self.NN * 4):
            a.e(f"v_mov_b32 v{self.ACC + r}, 0")
        a.e(f"s_mov_b32 s{S_SLOT}, 0")
        if self.T is None: a.e(f"s_mov_b32 s{S_CNT}, s{S_NT}")
        else: a.e(f"s_mov_b32 s{S_CNT}, {self.T}")
        if pre_barrier: pre_barrier(a)
        a.e("s_barrier")
        for r in self.reads(0, 0, vx0, wtiles): a.e(r)
        lab = a.lab("cl")
        a.e(f".p2align 3\n{lab}:")
        a.e("s_waitcnt lgkmcnt(0)")
        self.interleave(a, self.mfmas(0, orient), self.reads(1, 1, vx1, wtiles))
        a.e(f"""s_add_u32 s{S_TMP}, s{S_SLOT}, {self.STAGE}
s_cmp_eq_u32 s{S_TMP}, {S*self.STAGE}
s_cselect_b32 s{S_TMP}, 0, s{S_TMP}
s_sub_u32 s{S_DELTA}, s{S_TMP}, s{S_SLOT}
s_mov_b32 s{S_SLOT}, s{S_TMP}""")
        a.e("s_waitcnt lgkmcnt(0)\ns_barrier")
        for r in [vx0] + wregs + [vx1]:
            a.e(f"v_add_u32 v{r}, s{S_DELTA}, v{r}")
        self.interleave(a, self.mfmas(1, orient), self.reads(0, 0, vx0, wtiles))
        a.e(f"s_sub_u32 s{S_CNT}, s{S_CNT}, 1\ns_cmp_lg_u32 s{S_CNT}, 0\ns_cbranch_scc1 {lab}")
        a.e("s_waitcnt lgkmcnt(0)\ns_nop 7\ns_nop 1")

    def x_addr(self, a, vx0, vx1, rowbase):
        t = VT
        a.e(f"""v_and_b32 v{vx1}, 15, v{VL}
v_add_u32 v{vx1}, {rowbase}, v{vx1}
v_lshlrev_b32 v{vx1}, 7, v{vx1}
v_bfe_u32 v{vx0}, v{VL}, 1, 3
v_lshrrev_b32 v{t}, 4, v{VL}
v_xor_b32 v{vx0}, v{vx0}, v{t}
v_lshl_add_u32 v{vx0}, v{vx0}, 4, v{vx1}
v_xor_b32 v{vx1}, 64, v{vx0}""")

    def w_lanebase(self, a, vd, vswz):
        t = VT
        sh = 2 if self.kperm else 3
        a.e(f"""v_lshrrev_b32 v{t}, 4, v{VL}
v_bfe_u32 v{t+1}, v{VL}, 2, 2
v_lshl_add_u32 v{vd}, v{t}, {sh}, v{t+1}
v_lshlrev_b32 v{vd}, 7, v{vd}
v_and_b32 v{t+2}, 3, v{VL}
v_lshl_add_u32 v{vd}, v{t+2}, 3, v{vd}
v_add_u32 v{vd}, 16384, v{vd}
v_and_b32 v{t}, 1, v{t}
v_lshlrev_b32 v{t}, 1, v{t}
v_lshrrev_b32 v{t+1}, 1, v{t+1}
v_or_b32 v{vswz}, v{t}, v{t+1}""")

class LnSide:
    def __init__(self, g, colmap):
        self.g, self.colmap = g, colmap
    def issue(self, a):
        a.e(f"""v_subrev_u32 v13, 256, v0
v_and_b32 v14, 127, v13
v_lshrrev_b32 v15, 7, v13
v_lshlrev_b32 v16, 3, v14
v_lshl_add_u32 v16, v15, 17, v16""")
        for p in range(8):
            a.e(f"s_mov_b32 s{S_T5}, {p*16384}\nbuffer_load_dwordx2 v[{20+2*p}:{21+2*p}], v16, s[{SRD_S}:{SRD_S+3}], s{S_T5} offen")
        self.colmap(a)
        for p in range(NCP):
            a.e(f"s_mov_b32 s{S_T5}, {p*self.ncols*4}\nbuffer_load_dword v{36+p}, v17, s[{SRD_T}:{SRD_T+3}], s{S_T5} offen")
    n = 8 + NCP
    def partA(self, a):
        SCR = self.g.SCR
        for p in range(1, 8):
            a.e(f"v_add_f32 v20, v20, v{20+2*p}\nv_add_f32 v21, v21, v{21+2*p}")
        a.e("v_add_f32 v36, v36, v37\nv_add_f32 v38, v38, v39\nv_add_f32 v36, v36, v38")
        a.e(f"v_lshlrev_b32 v18, 3, v13\nv_add_u32 v18, {SCR+2048}, v18\nds_write_b64 v18, v[20:21]")
        a.e(f"v_lshlrev_b32 v18, 2, v13\nv_add_u32 v18, {SCR+1024}, v18\nds_write_b32 v18, v36")
        a.e("s_waitcnt lgkmcnt(0)")
    def partB(self, a):
        SCR = self.g.SCR
        skip = a.lab("sb")
        a.e(f"s_cmp_ge_u32 s{S_WAVE}, 6\ns_cbranch_scc1 {skip}")
        a.e(f"""v_lshlrev_b32 v18, 3, v13
v_add_u32 v18, {SCR+2048}, v18
ds_read_b64 v[20:21], v18
ds_read_b64 v[22:23], v18 offset:1024
s_waitcnt lgkmcnt(0)
v_add_f32 v20, v20, v22
v_add_f32 v21, v21, v23
v_mul_f32 v20, {f2u(1.0/1024):#x}, v20
v_mul_f32 v21, {f2u(1.0/1024):#x}, v21
v_fma_f32 v21, -v20, v20, v21
v_max_f32 v21, 0, v21
v_add_f32 v21, {f2u(1e-5):#x}, v21
v_rsq_f32 v21, v21
v_sub_f32 v20, 0, v20
v_lshlrev_b32 v18, 2, v13
v_add_u32 v18, {SCR}, v18
ds_write_b32 v18, v20
ds_write_b32 v18, v21 offset:512
s_waitcnt lgkmcnt(0)
{skip}:""")

def split_roles(a, lab_loader):
    a.e(f"s_cmp_ge_u32 s{S_WAVE}, 4\ns_cbranch_scc1 {lab_loader}")
    a.e(f"v_and_b32 v{VL}, 63, v0")

def body_res(a, lab):
    g = Gemm("res", None, None, 2048, 1, 6, 2, 4, True, [0])
    ld = a.lab("resld"); done = a.lab("resdone")
    a.e(f"{lab}:")
    split_roles(a, ld)
    VX0, VX1, VW, VSW = 236, 237, 232, 238
    RES = 96
    VO = 230
    a.e(f"s_lshl_b32 s{S_T4}, s{S_WAVE}, 5")
    g.x_addr(a, VX0, VX1, f"s{S_T4}")
    g.w_lanebase(a, VW, VSW)
    for sg in range(3, -1, -1):
        a.e(f"v_xor_b32 v{VT}, {sg}, v{VSW}\nv_lshl_add_u32 v{VW+sg}, v{VT}, 5, v{VW}")
    a.e(f"""v_and_b32 v{VT}, 15, v{VL}
v_add_u32 v{VT}, s{S_T4}, v{VT}
v_lshlrev_b32 v{VO}, 11, v{VT}
v_bfe_u32 v{VT+1}, v{VL}, 4, 1
v_lshlrev_b32 v{VT+1}, 1, v{VT+1}
v_lshrrev_b32 v{VT+2}, 5, v{VL}
v_or_b32 v{VT+1}, v{VT+1}, v{VT+2}
v_lshl_add_u32 v{VO}, v{VT+1}, 4, v{VO}
v_lshlrev_b32 v{VO+1}, 3, v{VT}
s_mov_b32 s{S_C0}, 32768""")
    for ts in range(2):
        for p in range(2):
            r = RES + (ts*2+p)*4
            so = f"s{S_C0}" if ts else "0"
            a.e(f"buffer_load_dwordx4 v[{r}:{r+3}], v{VO}, s[{SRD_R}:{SRD_R+3}], {so} offen offset:{p*64}")
    wt = [(VW + sg, 0) for sg in range(4)]
    g.compute_loop(a, VX0, VX1, [VW+i for i in range(4)], wt, ["ns"]*4)
    a.e("s_waitcnt vmcnt(0)")
    T = 112
    for ts in range(2):
        SUM, SQ = 128 + ts*4, 130 + ts*4
        a.e(f"v_mov_b32 v{SUM}, 0\nv_mov_b32 v{SUM+1}, 0\nv_mov_b32 v{SQ}, 0\nv_mov_b32 v{SQ+1}, 0")
        for p in range(2):
            c0, c1 = g.acc(ts, 2*p), g.acc(ts, 2*p+1)
            for r in range(4):
                a.e(f"v_permlane16_swap_b32 v{c0+r}, v{c1+r}")
            R = RES + (ts*2+p)*4
            for q in range(4):
                a.e(f"v_lshlrev_b32 v{T+2*q}, 16, v{R+q}\nv_and_b32 v{T+2*q+1}, 0xffff0000, v{R+q}")
            for q in range(4):
                c = (c0 if q < 2 else c1) + 2*(q & 1)
                a.e(f"v_pk_add_f32 v[{T+2*q}:{T+2*q+1}], v[{T+2*q}:{T+2*q+1}], v[{c}:{c+1}]")
            for q in range(4):
                a.e(f"v_pk_add_f32 v[{SUM}:{SUM+1}], v[{SUM}:{SUM+1}], v[{T+2*q}:{T+2*q+1}]")
                a.e(f"v_pk_fma_f32 v[{SQ}:{SQ+1}], v[{T+2*q}:{T+2*q+1}], v[{T+2*q}:{T+2*q+1}], v[{SQ}:{SQ+1}]")
            O = 120 + p*4
            for q in range(4):
                a.e(f"v_cvt_pk_bf16_f32 v{O+q}, v{T+2*q}, v{T+2*q+1}")
            so = f"s{S_C0}" if ts else "0"
            a.e(f"buffer_store_dwordx4 v[{O}:{O+3}], v{VO}, s[{SRD_O}:{SRD_O+3}], {so} offen offset:{p*64} sc1")
        a.e(f"v_add_f32 v{SUM}, v{SUM}, v{SUM+1}\nv_add_f32 v{SUM+1}, v{SQ}, v{SQ+1}")
        for sw in ("v_permlane16_swap_b32", "v_permlane32_swap_b32"):
            a.e(f"v_mov_b32 v{SQ}, v{SUM}\nv_mov_b32 v{SQ+1}, v{SUM+1}\ns_nop 1")
            a.e(f"{sw} v{SUM}, v{SQ}\n{sw} v{SUM+1}, v{SQ+1}\ns_nop 1")
            a.e(f"v_add_f32 v{SUM}, v{SUM}, v{SQ}\nv_add_f32 v{SUM+1}, v{SUM+1}, v{SQ+1}")
    a.e("s_mov_b64 exec, 0xffff")
    a.e(f"buffer_store_dwordx2 v[128:129], v{VO+1}, s[{SRD_S}:{SRD_S+3}], 0 offen sc1")
    a.e(f"buffer_store_dwordx2 v[132:133], v{VO+1}, s[{SRD_S}:{SRD_S+3}], 0 offen offset:128 sc1")
    a.e("s_endpgm")
    a.e(f"{ld}:")
    g.loader(a)
    a.e("s_endpgm")
    return g

def stub_res(a, name, body, l, which):
    done = a.lab("done")
    a.e(f".globl {name}\n.p2align 8\n.type {name},@function\n{name}:")
    load_args(a, done)
    wg_map(a, "4x8")
    if which == "wo":
        a.e(f"s_mov_b32 s{S_STRX}, 2048\ns_mov_b32 s{S_NT}, 16")
        a.e(f"s_lshl_b32 s{S_T2}, s{S_I}, 18")
        srd(a, SRD_X, S_WS, [WS_O[l], f"s{S_T2}"], 128*2048)
        a.e(f"s_lshl_b32 s{S_T3}, s{S_J}, 7")
        srd(a, SRD_W, S_WO, [f"s{S_T3}"], D*D*2)
        res = (S_X, 0) if l == 0 else (S_WS, WS_X2)
        out = (S_WS, WS_X1[l]); stat = WS_STAT[1 if l == 0 else 3]
    else:
        a.e(f"s_mov_b32 s{S_STRX}, 7168\ns_mov_b32 s{S_NT}, 56")
        a.e(f"s_mul_i32 s{S_T2}, s{S_I}, {128*7168}")
        srd(a, SRD_X, S_WS, [WS_H[l], f"s{S_T2}"], 128*7168)
        a.e(f"s_lshl_b32 s{S_T3}, s{S_J}, 7")
        srd(a, SRD_W, S_W2, [f"s{S_T3}"], F*D*2)
        res = (S_WS, WS_X1[l])
        out = (S_WS, WS_X2) if l == 0 else (S_OUT, 0)
        stat = WS_STAT[2] if l == 0 else None
    a.e(f"s_lshl_b32 s{S_T2}, s{S_I}, 18\ns_add_u32 s{S_T2}, s{S_T2}, s{S_T3}")
    a.e(f"s_sub_u32 s{S_T4}, {XBYTES}, s{S_T2}")
    srd(a, SRD_R, res[0], [res[1], f"s{S_T2}"], f"s{S_T4}")
    srd(a, SRD_O, out[0], [out[1], f"s{S_T2}"], f"s{S_T4}")
    a.e(f"s_lshl_b32 s{S_T2}, s{S_J}, 14\ns_lshl_b32 s{S_T3}, s{S_I}, 10\ns_add_u32 s{S_T2}, s{S_T2}, s{S_T3}")
    if stat is not None: srd(a, SRD_S, S_WS, [stat, f"s{S_T2}"], 1024)
    else: srd(a, SRD_S, S_WS, [WS_STAT[0]], 0)
    a.e(f"s_branch {body}\n{done}:\ns_endpgm")

def body_w1(a, lab):
    g = Gemm("w1", 16, 2048, 7168, 4, 3, 4, 7, False, [0, 128, 256, 384])
    ld = a.lab("w1ld")
    a.e(f"{lab}:")
    split_roles(a, ld)
    VX0, VX1, VW, VSW, VB = 236, 237, 224, 238, 239
    a.e(f"s_lshr_b32 s{S_T4}, s{S_WAVE}, 1\ns_lshl_b32 s{S_T4}, s{S_T4}, 6")
    a.e(f"s_and_b32 s{S_T5}, s{S_WAVE}, 1")
    g.x_addr(a, VX0, VX1, f"s{S_T4}")
    g.w_lanebase(a, VB, VSW)
    a.e(f"s_and_b32 s{S_T2}, s{S_J}, 1\ns_lshl_b32 s{S_T2}, s{S_T2}, 1")
    VCS = 216
    for tn in range(7):
        st = 72 + tn
        a.e(f"s_cmp_eq_u32 s{S_T5}, 0\ns_cselect_b32 s{st}, {tn}, {8+tn if tn < 6 else 7}\ns_add_u32 s{st}, s{st}, s{S_T2}")
        a.e(f"s_and_b32 s{S_TMP}, s{st}, 3\ns_lshr_b32 s{S_T3}, s{st}, 2\ns_lshl_b32 s{S_T3}, s{S_T3}, 13")
        a.e(f"v_xor_b32 v{VT}, s{S_TMP}, v{VSW}\nv_lshl_add_u32 v{VT}, v{VT}, 5, v{VB}\nv_add_u32 v{VW+tn}, s{S_T3}, v{VT}")
    wt = [(VW + tn, 0) for tn in range(7)]
    g.compute_loop(a, VX0, VX1, [VW+i for i in range(7)], wt, ["ns"]*7)
    SCR = g.SCR
    CS = 112
    a.e(f"v_lshrrev_b32 v{VT}, 4, v{VL}\nv_lshlrev_b32 v{VT}, 4, v{VT}\nv_add_u32 v{VT}, {SCR+1024}, v{VT}")
    for tn in range(7):
        a.e(f"s_lshl_b32 s{S_TMP}, s{72+tn}, 6\nv_add_u32 v{VT+1}, s{S_TMP}, v{VT}\nds_read_b128 v[{CS+4*tn}:{CS+4*tn+3}], v{VT+1}")
    a.e(f"v_and_b32 v{VT}, 15, v{VL}\nv_add_u32 v{VT}, s{S_T4}, v{VT}\nv_lshlrev_b32 v{VT+1}, 2, v{VT}\nv_add_u32 v{VT+1}, {SCR}, v{VT+1}")
    for ts in range(4):
        a.e(f"ds_read_b32 v{140+4*ts}, v{VT+1} offset:{ts*64}\nds_read_b32 v{141+4*ts}, v{VT+1} offset:{512+ts*64}")
    VO, VS = 230, 231
    a.e(f"""s_mov_b32 s{S_TMP}, 7168
v_mul_lo_u32 v{VO}, v{VT}, s{S_TMP}
v_lshrrev_b32 v{VT+2}, 4, v{VL}
v_lshl_add_u32 v{VO}, v{VT+2}, 4, v{VO}
s_mul_i32 s{S_T2}, s{S_J}, 7
s_add_u32 s{S_T3}, s{S_T2}, 3
s_lshl_b32 s{S_T3}, s{S_T3}, 6
s_lshl_b32 s{S_TMP}, s{S_T5}, 3
s_add_u32 s{S_T3}, s{S_T3}, s{S_TMP}
v_add_u32 v{VS}, s{S_T3}, v{VO}
s_lshl_b32 s{S_TMP}, s{S_T5}, 2
s_add_u32 s{S_T2}, s{S_T2}, s{S_TMP}
s_lshl_b32 s{S_T2}, s{S_T2}, 6
v_add_u32 v{VO}, s{S_T2}, v{VO}
s_mov_b32 s{S_C0}, 0
s_waitcnt lgkmcnt(0)""")
    for ts in range(4):
        a.e(f"v_mul_f32 v{142+4*ts}, {LOG2E:#x}, v{141+4*ts}\nv_sub_f32 v{142+4*ts}, 0, v{142+4*ts}")
    T = 160
    for ts in range(4):
        P, Q = 140+4*ts, 142+4*ts
        outregs = []
        for tn in range(7):
            c = g.acc(ts, tn)
            O = 200 + (tn % 2)*2 + ((tn//2) % 2)*4
            for h in range(2):
                t = T + ((tn*2+h) % 4) * 8
                cc, cs = c + 2*h, CS + 4*tn + 2*h
                a.e(f"v_pk_fma_f32 v[{t}:{t+1}], v[{cs}:{cs+1}], v[{P}:{P+1}], v[{cc}:{cc+1}] op_sel_hi:[1,0,1]")
                a.e(f"v_pk_mul_f32 v[{t+2}:{t+3}], v[{t}:{t+1}], v[{Q}:{Q+1}] op_sel_hi:[1,0]")
                a.e(f"v_pk_mul_f32 v[{t}:{t+1}], v[{t}:{t+1}], v[{P}:{P+1}] op_sel:[0,1] op_sel_hi:[1,1]")
                a.e(f"v_exp_f32 v{t+2}, v{t+2}\nv_exp_f32 v{t+3}, v{t+3}")
                a.e(f"s_nop 0\nv_pk_add_f32 v[{t+2}:{t+3}], v[{t+2}:{t+3}], 1.0 op_sel_hi:[1,0]")
                a.e(f"v_rcp_f32 v{t+2}, v{t+2}\nv_rcp_f32 v{t+3}, v{t+3}")
                a.e(f"s_nop 0\nv_pk_mul_f32 v[{t}:{t+1}], v[{t}:{t+1}], v[{t+2}:{t+3}]")
                a.e(f"v_cvt_pk_bf16_f32 v{O+h}, v{t}, v{t+1}")
            if tn % 2 == 1:
                Q4 = O - 2
                a.e(f"buffer_store_dwordx4 v[{Q4}:{Q4+3}], v{VO}, s[{SRD_O}:{SRD_O+3}], s{S_C0} offen offset:{(tn//2)*64} sc1")
            elif tn == 6:
                a.e(f"buffer_store_dwordx2 v[{O}:{O+1}], v{VS}, s[{SRD_O}:{SRD_O+3}], s{S_C0} offen sc1")
        if ts < 3: a.e(f"s_add_u32 s{S_C0}, s{S_C0}, {16*7168}")
    a.e("s_endpgm")
    a.e(f"{ld}:")
    def colmap(a):
        a.e("v_lshlrev_b32 v17, 2, v13")
    side = LnSide(g, colmap); side.ncols = F
    g.loader(a, side.issue, side.n, side.partA, side.partB)
    a.e("s_endpgm")
    return g

def stub_w1(a, name, body, l):
    done = a.lab("done")
    a.e(f".globl {name}\n.p2align 8\n.type {name},@function\n{name}:")
    load_args(a, done)
    wg_map(a, "8x4")
    a.e(f"s_lshl_b32 s{S_T2}, s{S_I}, 18")
    srd(a, SRD_X, S_WS, [WS_X1[l], f"s{S_T2}"], 128*2048)
    a.e(f"s_mul_i32 s{S_T3}, s{S_J}, 224\ns_and_b32 s{S_T4}, s{S_J}, 1\ns_lshl_b32 s{S_T4}, s{S_T4}, 5\ns_sub_u32 s{S_T3}, s{S_T3}, s{S_T4}")
    a.e(f"s_lshl_b32 s{S_T4}, s{S_T3}, 1\ns_sub_u32 s{S_T5}, {D*F*2}, s{S_T4}")
    srd(a, SRD_W, S_W1, [f"s{S_T4}"], f"s{S_T5}")
    a.e(f"s_lshl_b32 s{S_T4}, s{S_T3}, 2\ns_sub_u32 s{S_T5}, {NCP*F*4}, s{S_T4}")
    srd(a, SRD_T, S_WS, [WS_CSW, f"s{S_T4}"], f"s{S_T5}")
    a.e(f"s_mul_i32 s{S_T2}, s{S_I}, {128*7168}")
    srd(a, SRD_O, S_WS, [WS_H[l], f"s{S_T2}"], 128*7168)
    a.e(f"s_lshl_b32 s{S_T2}, s{S_I}, 10\ns_sub_u32 s{S_T5}, {STATBYTES}, s{S_T2}")
    srd(a, SRD_S, S_WS, [WS_STAT[1 if l == 0 else 3], f"s{S_T2}"], f"s{S_T5}")
    a.e(f"s_branch {body}\n{done}:\ns_endpgm")

def body_qkv(a, lab, S=3):
    g = Gemm("qkv", 16, 2048, 6144, 3, S, 4, 6, False, [0, 2048, 4096])
    ld = a.lab("qkvld")
    a.e(f"{lab}:")
    split_roles(a, ld)
    VX0, VX1, VW, VSW, VB = 236, 237, 224, 238, 239
    a.e(f"s_lshr_b32 s{S_T4}, s{S_WAVE}, 1\ns_lshl_b32 s{S_T4}, s{S_T4}, 6")
    a.e(f"s_and_b32 s{S_T5}, s{S_WAVE}, 1")
    g.x_addr(a, VX0, VX1, f"s{S_T4}")
    g.w_lanebase(a, VB, VSW)
    for t in range(2):
        a.e(f"s_lshl_b32 s{S_TMP}, s{S_T5}, 1\ns_add_u32 s{S_TMP}, s{S_TMP}, {t}")
        a.e(f"v_xor_b32 v{VT}, s{S_TMP}, v{VSW}\nv_lshl_add_u32 v{VW+t}, v{VT}, 5, v{VB}")
    wt = [(VW + (tn & 1), (tn >> 1) * 8192) for tn in range(6)]
    g.compute_loop(a, VX0, VX1, [VW, VW+1], wt, ["ns", "ns", "sn", "sn", "sn", "sn"])
    SCR = g.SCR
    CSQ, CSK = 96, 104
    a.e(f"""v_lshrrev_b32 v{VT}, 4, v{VL}
v_and_b32 v{VT+1}, 15, v{VL}
s_lshl_b32 s{S_TMP}, s{S_T5}, 7
v_lshlrev_b32 v{VT+2}, 4, v{VT}
v_add_u32 v{VT+2}, s{S_TMP}, v{VT+2}
v_add_u32 v{VT+2}, {SCR+1024}, v{VT+2}
ds_read_b128 v[{CSQ}:{CSQ+3}], v{VT+2}
ds_read_b128 v[{CSQ+4}:{CSQ+7}], v{VT+2} offset:64
v_lshlrev_b32 v{VT+2}, 2, v{VT+1}
v_add_u32 v{VT+2}, s{S_TMP}, v{VT+2}
v_add_u32 v{VT+2}, {SCR+1024}, v{VT+2}
ds_read_b32 v{CSK}, v{VT+2} offset:256
ds_read_b32 v{CSK+1}, v{VT+2} offset:320
ds_read_b32 v{CSK+2}, v{VT+2} offset:512
ds_read_b32 v{CSK+3}, v{VT+2} offset:576""")
    a.e(f"v_add_u32 v{VT+3}, s{S_T4}, v{VT+1}\nv_lshlrev_b32 v{VT+4}, 2, v{VT+3}\nv_add_u32 v{VT+4}, {SCR}, v{VT+4}")
    for ts in range(4):
        a.e(f"ds_read_b32 v{108+4*ts}, v{VT+4} offset:{ts*64}\nds_read_b32 v{109+4*ts}, v{VT+4} offset:{512+ts*64}")
    VKS = 229
    a.e(f"v_lshlrev_b32 v{VKS}, 2, v{VT}\nv_add_u32 v{VKS}, s{S_T4}, v{VKS}\nv_lshlrev_b32 v{VKS}, 2, v{VKS}\nv_add_u32 v{VKS}, {SCR}, v{VKS}")
    VO = 230
    a.e(f"""v_lshlrev_b32 v{VO}, 11, v{VT+3}
v_lshl_add_u32 v{VO}, v{VT}, 4, v{VO}
s_lshl_b32 s{S_TMP}, s{S_J}, 1
s_add_u32 s{S_TMP}, s{S_TMP}, s{S_T5}
s_lshl_b32 s{S_T2}, s{S_TMP}, 6
v_add_u32 v{VO}, s{S_T2}, v{VO}
s_mul_i32 s{S_T3}, s{S_TMP}, {KVREC}
s_mov_b32 s{S_C0}, 0
s_mov_b32 s{S_C1}, {f2u(1e-6):#x}
v_mov_b32 v222, s{S_C1}
s_waitcnt lgkmcnt(0)""")
    for ts in range(4):
        a.e(f"v_mul_f32 v{110+4*ts}, {LOG2E:#x}, v{109+4*ts}")
    T = 124
    def phi_pair(src, cs, cs_b, P, Pb, Q, Qb, t, dst):
        pass
    for ts in range(4):
        P, Q = 108+4*ts, 110+4*ts
        for tq in range(2):
            c = g.acc(ts, tq)
            for h in range(2):
                t = T + ((tq*2+h) % 4) * 6
                cc, cs = c + 2*h, CSQ + 4*tq + 2*h
                a.e(f"v_pk_fma_f32 v[{t}:{t+1}], v[{cs}:{cs+1}], v[{P}:{P+1}], v[{cc}:{cc+1}] op_sel_hi:[1,0,1]")
                a.e(f"v_pk_mul_f32 v[{t+2}:{t+3}], v[{t}:{t+1}], v[{Q}:{Q+1}] op_sel_hi:[1,0]")
                a.e(f"v_pk_fma_f32 v[{t}:{t+1}], v[{t}:{t+1}], v[{P}:{P+1}], v[222:223] op_sel:[0,1,0] op_sel_hi:[1,1,0]")
                a.e(f"v_exp_f32 v{t+2}, v{t+2} clamp\nv_exp_f32 v{t+3}, v{t+3} clamp")
                a.e(f"v_max_f32 v{t}, v222, v{t}\nv_max_f32 v{t+1}, v222, v{t+1}")
                a.e(f"v_pk_add_f32 v[{t}:{t+1}], v[{t}:{t+1}], v[{t+2}:{t+3}]")
                a.e(f"v_cvt_pk_bf16_f32 v{200 + (ts%2)*4 + tq*2 + h}, v{t}, v{t+1}")
        O = 200 + (ts % 2) * 4
        a.e(f"buffer_store_dwordx4 v[{O}:{O+3}], v{VO}, s[{SRD_O}:{SRD_O+3}], s{S_C0} offen sc1")
        if ts < 3: a.e(f"s_add_u32 s{S_C0}, s{S_C0}, {16*2048}")
    PK, PV = 148, 164
    NM, RS, RL = 180, 184, 188
    for ts in range(4):
        u, hf = ts >> 1, ts & 1
        a.e(f"ds_read_b128 v[{NM}:{NM+3}], v{VKS} offset:{ts*64}\nds_read_b128 v[{RS}:{RS+3}], v{VKS} offset:{512+ts*64}\ns_waitcnt lgkmcnt(0)")
        for r in range(4):
            a.e(f"v_mul_f32 v{RL+r}, {LOG2E:#x}, v{RS+r}")
        for tk in range(2):
            c = g.acc(ts, 2 + tk)
            cs = CSK + tk
            csp, sel = (cs & ~1), (cs & 1)
            for h in range(2):
                t = T + ((tk*2+h) % 4) * 6
                cc = c + 2*h
                a.e(f"v_pk_fma_f32 v[{t}:{t+1}], v[{csp}:{csp+1}], v[{NM+2*h}:{NM+2*h+1}], v[{cc}:{cc+1}] op_sel:[{sel},0,0] op_sel_hi:[{sel},1,1]")
                a.e(f"v_pk_mul_f32 v[{t+2}:{t+3}], v[{t}:{t+1}], v[{RL+2*h}:{RL+2*h+1}]")
                a.e(f"v_pk_fma_f32 v[{t}:{t+1}], v[{t}:{t+1}], v[{RS+2*h}:{RS+2*h+1}], v[222:223] op_sel_hi:[1,1,0]")
                a.e(f"v_exp_f32 v{t+2}, v{t+2} clamp\nv_exp_f32 v{t+3}, v{t+3} clamp")
                a.e(f"v_max_f32 v{t}, v222, v{t}\nv_max_f32 v{t+1}, v222, v{t+1}")
                a.e(f"v_pk_add_f32 v[{t}:{t+1}], v[{t}:{t+1}], v[{t+2}:{t+3}]")
                a.e(f"v_cvt_pk_bf16_f32 v{PK + (tk*2+u)*4 + hf*2 + h}, v{t}, v{t+1}")
        for tv in range(2):
            c = g.acc(ts, 4 + tv)
            cs = CSK + 2 + tv
            csp, sel = (cs & ~1), (cs & 1)
            for h in range(2):
                t = T + ((tv*2+h) % 4) * 6
                cc = c + 2*h
                a.e(f"v_pk_fma_f32 v[{t}:{t+1}], v[{csp}:{csp+1}], v[{NM+2*h}:{NM+2*h+1}], v[{cc}:{cc+1}] op_sel:[{sel},0,0] op_sel_hi:[{sel},1,1]")
                a.e(f"v_pk_mul_f32 v[{t}:{t+1}], v[{t}:{t+1}], v[{RS+2*h}:{RS+2*h+1}]")
                a.e(f"v_cvt_pk_bf16_f32 v{PV + (tv*2+u)*4 + hf*2 + h}, v{t}, v{t+1}")
    KV, Z, ONE = 0, 16, 24
    for r in range(4): a.e(f"v_mov_b32 v{ONE+r}, 0x3f803f80")
    a.e("s_nop 1")
    for u in range(2):
        for tv in range(2):
            for tk in range(2):
                d = KV + (tv*2+tk)*4
                cin = f"v[{d}:{d+3}]" if u else "0"
                a.e(f"v_mfma_f32_16x16x32_bf16 v[{d}:{d+3}], v[{PK+(tk*2+u)*4}:{PK+(tk*2+u)*4+3}], v[{PV+(tv*2+u)*4}:{PV+(tv*2+u)*4+3}], {cin}")
        for tk in range(2):
            d = Z + tk*4
            cin = f"v[{d}:{d+3}]" if u else "0"
            a.e(f"v_mfma_f32_16x16x32_bf16 v[{d}:{d+3}], v[{PK+(tk*2+u)*4}:{PK+(tk*2+u)*4+3}], v[{ONE}:{ONE+3}], {cin}")
    a.e("s_nop 7\ns_nop 1")
    other = a.lab("wr1"); fin = a.lab("fin")
    a.e(f"s_lshl_b32 s{S_TMP}, s{S_T5}, 13\nv_lshlrev_b32 v{VT}, 4, v{VL}\nv_add_u32 v{VT}, s{S_TMP}, v{VT}")
    a.e(f"s_cmp_ge_u32 s{S_WAVE}, 2\ns_cbranch_scc0 {other}")
    for q in range(6):
        a.e(f"ds_write_b128 v{VT}, v[{4*q}:{4*q+3}] offset:{q*1024}")
    a.e(f"s_waitcnt lgkmcnt(0)\ns_barrier\ns_branch {fin}")
    a.e(f"{other}:\ns_barrier")
    for q in range(6):
        a.e(f"ds_read_b128 v[{32+4*q}:{35+4*q}], v{VT} offset:{q*1024}")
    a.e("s_waitcnt lgkmcnt(0)")
    for q in range(12):
        a.e(f"v_pk_add_f32 v[{2*q}:{2*q+1}], v[{2*q}:{2*q+1}], v[{32+2*q}:{33+2*q}]")
    a.e(f"v_lshlrev_b32 v{VT}, 5, v{VL}")
    for tv in range(2):
        for hf in range(2):
            a.e(f"buffer_store_dwordx4 v[{tv*8+hf*4}:{tv*8+hf*4+3}], v{VT}, s[{SRD_R}:{SRD_R+3}], s{S_T3} offen offset:{tv*2048+hf*16} sc1")
    a.e(f"""v_lshrrev_b32 v{VT}, 4, v{VL}
v_lshlrev_b32 v{VT}, 5, v{VT}
v_add_u32 v{VT}, 4096, v{VT}
s_mov_b32 exec_lo, 0x00010001
s_mov_b32 exec_hi, 0x00010001
buffer_store_dwordx4 v[16:19], v{VT}, s[{SRD_R}:{SRD_R+3}], s{S_T3} offen sc1
buffer_store_dwordx4 v[20:23], v{VT}, s[{SRD_R}:{SRD_R+3}], s{S_T3} offen offset:16 sc1""")
    a.e(f"{fin}:\ns_endpgm")
    a.e(f"{ld}:")
    def colmap(a):
        a.e("v_lshrrev_b32 v17, 6, v13\nv_lshlrev_b32 v17, 12, v17\nv_and_b32 v19, 63, v13\nv_lshl_add_u32 v17, v19, 2, v17")
    side = LnSide(g, colmap); side.ncols = 3 * D
    g.loader(a, side.issue, side.n, side.partA, side.partB)
    a.e("s_barrier\ns_endpgm")
    return g

def stub_qkv(a, name, body, l):
    done = a.lab("done")
    a.e(f".globl {name}\n.p2align 8\n.type {name},@function\n{name}:")
    load_args(a, done)
    wg_map(a, "8x4")
    a.e(f"s_lshl_b32 s{S_T2}, s{S_I}, 18")
    if l == 0: srd(a, SRD_X, S_X, [f"s{S_T2}"], 128*2048)
    else: srd(a, SRD_X, S_WS, [WS_X2, f"s{S_T2}"], 128*2048)
    srd(a, SRD_O, S_WS, [WS_PQ[l], f"s{S_T2}"], 128*2048)
    a.e(f"s_lshl_b32 s{S_T3}, s{S_J}, 7\ns_sub_u32 s{S_T5}, {D*3*D*2}, s{S_T3}")
    srd(a, SRD_W, S_WQKV, [f"s{S_T3}"], f"s{S_T5}")
    a.e(f"s_lshl_b32 s{S_T3}, s{S_J}, 8\ns_sub_u32 s{S_T5}, {NCP*3*D*4}, s{S_T3}")
    srd(a, SRD_T, S_WS, [WS_CSQ, f"s{S_T3}"], f"s{S_T5}")
    a.e(f"s_mul_i32 s{S_T2}, s{S_I}, {32*KVREC}")
    srd(a, SRD_R, S_WS, [WS_KVP[l], f"s{S_T2}"], 32*KVREC)
    a.e(f"s_lshl_b32 s{S_T2}, s{S_I}, 10\ns_sub_u32 s{S_T5}, {STATBYTES}, s{S_T2}")
    srd(a, SRD_S, S_WS, [WS_STAT[0 if l == 0 else 2], f"s{S_T2}"], f"s{S_T5}")
    a.e(f"s_branch {body}\n{done}:\ns_endpgm")

def body_att(a, lab):
    a.e(f"{lab}:")
    a.e(f"v_and_b32 v{VL}, 63, v0")
    a.e(f"""v_and_b32 v1, 15, v{VL}
s_lshl_b32 s{S_T4}, s{S_WAVE}, 6
v_add_u32 v1, s{S_T4}, v1
v_lshlrev_b32 v1, 11, v1
v_lshrrev_b32 v2, 4, v{VL}
v_lshl_add_u32 v1, v2, 4, v1
s_lshl_b32 s{S_TMP}, s{S_J}, 6
v_add_u32 v1, s{S_TMP}, v1
v_lshlrev_b32 v3, 5, v{VL}
v_lshlrev_b32 v4, 5, v2
v_add_u32 v4, 4096, v4""")
    a.e(f"s_mul_i32 s{S_T2}, s{S_WAVE}, {4*32*KVREC}")
    for b in range(4):
        R = 32 + 24*b
        if b: a.e(f"s_add_u32 s{S_T2}, s{S_T2}, {32*KVREC}")
        for tv in range(2):
            for hf in range(2):
                a.e(f"buffer_load_dwordx4 v[{R+tv*8+hf*4}:{R+tv*8+hf*4+3}], v3, s[{SRD_R}:{SRD_R+3}], s{S_T2} offen offset:{tv*2048+hf*16}")
        for hf in range(2):
            a.e(f"buffer_load_dwordx4 v[{R+16+hf*4}:{R+16+hf*4+3}], v4, s[{SRD_R}:{SRD_R+3}], s{S_T2} offen offset:{hf*16}")
    for ts in range(4):
        a.e(f"s_mov_b32 s{S_TMP}, {ts*16*2048}\nbuffer_load_dwordx4 v[{8+4*ts}:{11+4*ts}], v1, s[{SRD_X}:{SRD_X+3}], s{S_TMP} offen")
    a.e("s_waitcnt vmcnt(4)")
    for b in range(1, 4):
        for q in range(12):
            a.e(f"v_pk_add_f32 v[{32+2*q}:{33+2*q}], v[{32+2*q}:{33+2*q}], v[{32+24*b+2*q}:{33+24*b+2*q}]")
    a.e(f"s_mul_i32 s{S_TMP}, s{S_WAVE}, 6144\nv_lshlrev_b32 v5, 4, v{VL}\nv_add_u32 v6, s{S_TMP}, v5")
    for q in range(6):
        a.e(f"ds_write_b128 v6, v[{32+4*q}:{35+4*q}] offset:{q*1024}")
    a.e("s_waitcnt lgkmcnt(0)\ns_barrier")
    for w in range(4):
        for q in range(6):
            a.e(f"ds_read_b128 v[{32+24*w+4*q}:{35+24*w+4*q}], v5 offset:{w*6144+q*1024}")
    a.e("s_waitcnt lgkmcnt(0)")
    for w in range(1, 4):
        for q in range(12):
            a.e(f"v_pk_add_f32 v[{32+2*q}:{33+2*q}], v[{32+2*q}:{33+2*q}], v[{32+24*w+2*q}:{33+24*w+2*q}]")
    for t in range(3):
        for q in range(4):
            a.e(f"v_cvt_pk_bf16_f32 v{130+4*t+q}, v{32+8*t+2*q}, v{33+8*t+2*q}")
    a.e("s_waitcnt vmcnt(0)\ns_nop 1")
    for ts in range(4):
        for t in range(3):
            d = 144 + ts*12 + t*4
            a.e(f"v_mfma_f32_16x16x32_bf16 v[{d}:{d+3}], v[{130+4*t}:{133+4*t}], v[{8+4*ts}:{11+4*ts}], 0")
    a.e("s_nop 7")
    for ts in range(4):
        d = 144 + ts*12
        a.e(f"v_add_f32 v{d+8}, {f2u(1e-6):#x}, v{d+8}\nv_rcp_f32 v{d+8}, v{d+8}\ns_nop 0")
        for q in range(4):
            a.e(f"v_pk_mul_f32 v[{d+2*q}:{d+2*q+1}], v[{d+2*q}:{d+2*q+1}], v[{d+8}:{d+9}] op_sel_hi:[1,0]")
        for q in range(4):
            a.e(f"v_cvt_pk_bf16_f32 v{200+4*ts+q}, v{d+2*q}, v{d+2*q+1}")
        a.e(f"s_mov_b32 s{S_TMP}, {ts*16*2048}\nbuffer_store_dwordx4 v[{200+4*ts}:{203+4*ts}], v1, s[{SRD_O}:{SRD_O+3}], s{S_TMP} offen sc1")
    a.e("s_endpgm")

def stub_att(a, name, body, l):
    done = a.lab("done")
    a.e(f".globl {name}\n.p2align 8\n.type {name},@function\n{name}:")
    load_args(a, done)
    a.e(f"s_and_b32 s{S_J}, s2, 31\ns_lshr_b32 s{S_I}, s2, 5")
    a.e(f"s_lshl_b32 s{S_T2}, s{S_I}, 19")
    srd(a, SRD_X, S_WS, [WS_PQ[l], f"s{S_T2}"], 256*2048)
    srd(a, SRD_O, S_WS, [WS_O[l], f"s{S_T2}"], 256*2048)
    a.e(f"s_mul_i32 s{S_T2}, s{S_J}, {KVREC}\ns_sub_u32 s{S_T5}, {16*32*KVREC}, s{S_T2}")
    srd(a, SRD_R, S_WS, [WS_KVP[l], f"s{S_T2}"], f"s{S_T5}")
    a.e(f"s_branch {body}\n{done}:\ns_endpgm")

def kernel_prep(a, name):
    done = a.lab("done"); nocs = a.lab("nocs"); isw1 = a.lab("isw1"); csgo = a.lab("csgo")
    a.e(f".globl {name}\n.p2align 8\n.type {name},@function\n{name}:")
    load_args(a, done)
    a.e(f"v_and_b32 v{VL}, 63, v0")
    srd(a, SRD_X, S_X, [], XBYTES)
    srd(a, SRD_S, S_WS, [WS_STAT[0]], STATBYTES)
    a.e(f"""s_lshl_b32 s{S_T2}, s2, 3
s_lshl_b32 s{S_T3}, s{S_WAVE}, 1
s_add_u32 s{S_T2}, s{S_T2}, s{S_T3}
s_lshl_b32 s{S_T3}, s{S_T2}, 11
v_lshlrev_b32 v1, 4, v{VL}""")
    for r in range(2):
        for hf in range(2):
            a.e(f"s_add_u32 s{S_TMP}, s{S_T3}, {r*2048 + hf*1024}\nbuffer_load_dwordx4 v[{8+(r*2+hf)*4}:{11+(r*2+hf)*4}], v1, s[{SRD_X}:{SRD_X+3}], s{S_TMP} offen")
    a.e(f"s_cmp_ge_u32 s2, 208\ns_cbranch_scc1 {nocs}")
    a.e(f"s_cmp_ge_u32 s2, 96\ns_cbranch_scc1 {isw1}")
    a.e(f"""s_mul_hi_u32 s{S_I}, s2, {(2**32 + 23)//24}
s_mul_i32 s{S_TMP}, s{S_I}, 24
s_sub_u32 s{S_J}, s2, s{S_TMP}
s_mov_b32 s{S_STRX}, 6144""")
    srd(a, SRD_W, S_WQKV, [], D*3*D*2)
    srd(a, SRD_T, S_WS, [WS_CSQ], NCP*3*D*4)
    a.e(f"s_mov_b32 s{S_NT}, {3*D*4}\ns_branch {csgo}")
    a.e(f"""{isw1}:
s_sub_u32 s{S_T5}, s2, 96
s_mul_hi_u32 s{S_I}, s{S_T5}, {(2**32 + 27)//28}
s_mul_i32 s{S_TMP}, s{S_I}, 28
s_sub_u32 s{S_J}, s{S_T5}, s{S_TMP}
s_mov_b32 s{S_STRX}, 7168""")
    srd(a, SRD_W, S_W1, [], D*F*2)
    srd(a, SRD_T, S_WS, [WS_CSW], NCP*F*4)
    a.e(f"s_mov_b32 s{S_NT}, {F*4}")
    a.e(f"{csgo}:")
    a.e(f"""v_lshrrev_b32 v2, 4, v0
v_and_b32 v3, 15, v0
s_lshl_b32 s{S_TMP}, s{S_I}, 8
v_add_u32 v4, s{S_TMP}, v2
v_mul_lo_u32 v4, v4, s{S_STRX}
v_lshl_add_u32 v4, v3, 4, v4
s_lshl_b32 s{S_TMP}, s{S_J}, 8
v_add_u32 v4, s{S_TMP}, v4
s_lshl_b32 s{S_T4}, s{S_STRX}, 4
s_mov_b32 s{S_T5}, 0""")
    for i in range(16):
        a.e(f"buffer_load_dwordx4 v[{32+4*i}:{35+4*i}], v4, s[{SRD_W}:{SRD_W+3}], s{S_T5} offen")
        if i < 15: a.e(f"s_add_u32 s{S_T5}, s{S_T5}, s{S_T4}")
    for q in range(8): a.e(f"v_mov_b32 v{100+q}, 0")
    for i in range(16):
        a.e(f"s_waitcnt vmcnt({15-i})")
        for q in range(4):
            r = 32 + 4*i + q
            a.e(f"v_lshlrev_b32 v110, 16, v{r}\nv_and_b32 v111, 0xffff0000, v{r}\nv_pk_add_f32 v[{100+2*q}:{101+2*q}], v[{100+2*q}:{101+2*q}], v[110:111]")
    a.e(f"v_lshlrev_b32 v5, 9, v2\nv_lshl_add_u32 v5, v3, 5, v5\nds_write_b128 v5, v[100:103]\nds_write_b128 v5, v[104:107] offset:16")
    a.e("s_waitcnt lgkmcnt(0)\ns_barrier")
    sk = a.lab("sk")
    a.e(f"s_cmp_ge_u32 s{S_WAVE}, 2\ns_cbranch_scc1 {sk}")
    a.e("v_lshlrev_b32 v5, 2, v0")
    for r in range(16):
        a.e(f"ds_read_b32 v{32+r}, v5 offset:{r*512}")
    a.e("s_waitcnt lgkmcnt(0)")
    for r in range(1, 16): a.e(f"v_add_f32 v32, v32, v{32+r}")
    a.e(f"""s_mul_i32 s{S_TMP}, s{S_I}, s{S_NT}
s_lshl_b32 s{S_T5}, s{S_J}, 9
s_add_u32 s{S_TMP}, s{S_TMP}, s{S_T5}
buffer_store_dword v32, v5, s[{SRD_T}:{SRD_T+3}], s{S_TMP} offen sc1
{sk}:""")
    a.e(f"{nocs}:")
    a.e("s_waitcnt vmcnt(0)")
    for r in range(2):
        for hf in range(2):
            R = 8 + (r*2+hf)*4
            a.e("v_mov_b32 v120, 0\nv_mov_b32 v121, 0\nv_mov_b32 v122, 0\nv_mov_b32 v123, 0")
            for q in range(4):
                a.e(f"v_lshlrev_b32 v110, 16, v{R+q}\nv_and_b32 v111, 0xffff0000, v{R+q}")
                a.e("v_pk_add_f32 v[120:121], v[120:121], v[110:111]\nv_pk_fma_f32 v[122:123], v[110:111], v[110:111], v[122:123]")
            a.e("v_add_f32 v120, v120, v121\nv_add_f32 v121, v122, v123\ns_nop 1")
            for dpp in ("quad_perm:[1,0,3,2]", "quad_perm:[2,3,0,1]", "row_half_mirror"):
                a.e(f"v_add_f32_dpp v120, v120, v120 {dpp} row_mask:0xf bank_mask:0xf\nv_add_f32_dpp v121, v121, v121 {dpp} row_mask:0xf bank_mask:0xf\ns_nop 1")
            a.e(f"""v_lshrrev_b32 v5, 3, v{VL}
v_lshlrev_b32 v5, 14, v5
s_add_u32 s{S_TMP}, s{S_T2}, {r}
s_lshl_b32 s{S_TMP}, s{S_TMP}, 3
s_add_u32 s{S_TMP}, s{S_TMP}, {hf*8*16384}
s_mov_b32 exec_lo, 0x01010101
s_mov_b32 exec_hi, 0x01010101
buffer_store_dwordx2 v[120:121], v5, s[{SRD_S}:{SRD_S+3}], s{S_TMP} offen sc1
s_mov_b64 exec, -1""")
    a.e(f"{done}:\ns_endpgm")

def descriptor(name, vgpr=256, sgpr=96):
    return f""".amdhsa_kernel {name}
  .amdhsa_next_free_vgpr {vgpr}
  .amdhsa_next_free_sgpr {sgpr}
  .amdhsa_accum_offset {vgpr}
  .amdhsa_group_segment_fixed_size 0
  .amdhsa_kernarg_size 72
  .amdhsa_user_sgpr_count 2
  .amdhsa_user_sgpr_kernarg_segment_ptr 1
  .amdhsa_system_sgpr_workgroup_id_x 1
.end_amdhsa_kernel"""

HEADER = """; Kernarg layout for this problem (72 bytes, ptrs only, base s[0:1]):
;   offset  16: d_in[2] A_wo  shape=(1024, 1024) dtype=bfloat16
;   offset  64: d_ws      268435456 bytes workspace
"""

def build(nlaunch=None):
    a = Asm()
    names = []
    def K(n): return n + "_kernel"
    ldsq = 3*40960 + 4096; ldsw = 3*49152 + 4096; ldsr = 6*24576
    launches = [("prep", 256, 16384)]
    for l in range(2):
        launches += [(f"qkv{l}", 512, ldsq), (f"att{l}", 256, 24576), (f"wo{l}", 512, ldsr), (f"w1f{l}", 512, ldsw), (f"w2f{l}", 512, ldsr)]
    if nlaunch: launches = launches[:nlaunch]
    head = HEADER + "".join(f"; @launch kernel={K(n)} grid=(256,1,1) block=({b},1,1) lds={lds}\n" for n, b, lds in launches)
    a.e('.amdgcn_target "amdgcn-amd-amdhsa--gfx950"\n.text')
    kernel_prep(a, K("prep"))
    for l in range(2):
        stub_qkv(a, K(f"qkv{l}"), "B_qkv", l)
        stub_att(a, K(f"att{l}"), "B_att", l)
        stub_res(a, K(f"wo{l}"), "B_res", l, "wo")
        stub_w1(a, K(f"w1f{l}"), "B_w1", l)
        stub_res(a, K(f"w2f{l}"), "B_res", l, "w2")
    a.e(".p2align 8"); body_qkv(a, "B_qkv")
    a.e(".p2align 8"); body_att(a, "B_att")
    a.e(".p2align 8"); body_res(a, "B_res")
    a.e(".p2align 8"); body_w1(a, "B_w1")
    allk = ["prep"] + [f"{k}{l}" for l in range(2) for k in ("qkv", "att", "wo", "w1f", "w2f")]
    used = [n for n, _, _ in launches]
    desc = '.section .rodata,"a"\n' + "".join(".p2align 6\n" + descriptor(K(n)) + "\n" for n in allk)
    return head + a.text() + desc, launches

if __name__ == "__main__":
    txt, launches = build()
    out = sys.argv[1] if len(sys.argv) > 1 else f"cdna_kernels/{NAME}.s"
    open(out, "w").write(txt)
    print("wrote", out, len(txt), "bytes")
```

```python
import sys, math, struct

NAME = "interleave_layers__linear_attn_block__dense_activation_silu__prompt"
S_ROWS, D, F = 2048, 1024, 3584

def set_layout(base=0, reuse=False):
    global WS_PQ, WS_O, WS_X1, WS_X2, WS_H, WS_KVP, WS_STAT, WS_CSQ, WS_CSW, WS_PROF
    WS_PQ   = [base + 0x0000000, base + (0x0000000 if reuse else 0x0400000)]
    WS_O    = [base + 0x0800000, base + (0x0800000 if reuse else 0x0C00000)]
    WS_X1   = [base + 0x1000000, base + 0x1400000]
    WS_X2   = base + 0x1800000
    WS_H    = [base + 0x2000000, base + (0x2000000 if reuse else 0x3000000)]
    WS_KVP  = [base + 0x4000000, base + 0x4400000]
    WS_STAT = [base + 0x4800000 + n * 0x40000 for n in range(4)]
    WS_CSQ  = base + 0x4900000
    WS_CSW  = base + 0x4910000
    WS_PROF = base + 0x4A00000
set_layout()
KVREC   = 4224
NCP     = 4
XBYTES  = S_ROWS * D * 2
HBYTES  = S_ROWS * F * 2
STATBYTES = 16 * S_ROWS * 8

LOG2E = 0x3fb8aa3b
def f2u(x): return struct.unpack("<I", struct.pack("<f", x))[0]

class Asm:
    def __init__(self):
        self.L = []; self.n = 0
    def e(self, s):
        for ln in s.split("\n"):
            ln = ln.strip()
            if ln: self.L.append(ln if ln.endswith(":") else "  " + ln)
    def lab(self, base):
        self.n += 1
        return f"L_{base}_{self.n}"
    def text(self): return "\n".join(self.L) + "\n"

S_X, S_WQKV, S_WO, S_BX, S_W1, S_W2, S_OUT, S_DBG, S_WS = 4, 6, 8, 10, 12, 14, 16, 18, 20
SRD_X, SRD_W, SRD_O, SRD_R, SRD_S, SRD_T = 24, 28, 32, 36, 40, 44
S_WAVE, S_I, S_J, S_SLOT, S_TMP, S_CNT, S_KX = 48, 49, 50, 51, 52, 53, 54
S_KW = 55
S_T2, S_T3, S_T4 = 59, 60, 61
S_DELTA = 62
S_T5 = 63
S_STRX, S_NT = 64, 65
S_C0, S_C1, S_C2 = 66, 67, 68
S_LX, S_LW = 69, 70
VL = 255
VT = 240

PROF = False
OPT = {}
S_KID = 71
S_ST = 80
def stamp(a, k):
    if PROF: a.e(f"s_memtime s[{S_ST+2*k}:{S_ST+2*k+1}]")
def stamp_rt(a, k):
    if PROF: a.e(f"s_memrealtime s[{S_ST+2*k}:{S_ST+2*k+1}]")
def stamp_flush(a, role):
    if not PROF: return
    sk = a.lab("pf")
    a.e(f"s_cmp_lg_u32 s{S_WAVE}, {0 if role == 0 else 4}\ns_cbranch_scc1 {sk}")
    a.e("s_waitcnt lgkmcnt(0) vmcnt(0)")
    a.e("s_mov_b64 exec, 1")
    a.e(f"s_lshl_b32 s{S_TMP}, s{S_KID}, 8\ns_add_u32 s{S_TMP}, s{S_TMP}, s2\ns_lshl_b32 s{S_TMP}, s{S_TMP}, 1\ns_add_u32 s{S_TMP}, s{S_TMP}, {role}\ns_lshl_b32 s{S_TMP}, s{S_TMP}, 5")
    a.e(f"s_add_u32 s{S_TMP}, s{S_TMP}, {WS_PROF}\nv_mov_b32 v240, s{S_TMP}")
    for k in range(8): a.e(f"v_mov_b32 v{242+k}, s{S_ST+2*k}")
    a.e(f"global_store_dwordx4 v240, v[242:245], s[{S_WS}:{S_WS+1}]\nglobal_store_dwordx4 v240, v[246:249], s[{S_WS}:{S_WS+1}] offset:16")
    a.e(f"{sk}:")

def srd(a, dst, ptr, offs, size):
    first = True
    for off in offs:
        if isinstance(off, int) and off == 0: continue
        src = ptr if first else dst
        a.e(f"s_add_u32 s{dst}, s{src}, {off}\ns_addc_u32 s{dst+1}, s{src+1}, 0")
        first = False
    if first:
        a.e(f"s_mov_b32 s{dst}, s{ptr}\ns_mov_b32 s{dst+1}, s{ptr+1}")
    a.e(f"s_mov_b32 s{dst+2}, {size}\ns_mov_b32 s{dst+3}, 0x00020000")

def load_args(a, done, kid=0, nwg=256):
    a.e(f"s_cmp_ge_u32 s2, {nwg}\ns_cbranch_scc1 {done}")
    stamp_rt(a, 0); stamp(a, 1)
    if PROF: a.e(f"s_mov_b32 s{S_KID}, {kid}")
    a.e(f"s_load_dwordx16 s[4:19], s[0:1], 0\ns_load_dwordx2 s[20:21], s[0:1], 64")
    a.e(f"v_lshrrev_b32 v1, 6, v0\ns_nop 0\nv_readfirstlane_b32 s{S_WAVE}, v1")
    a.e("s_waitcnt lgkmcnt(0)")

def wg_map(a, mode):
    a.e(f"s_and_b32 s{S_TMP}, s2, 7\ns_lshr_b32 s{S_T2}, s2, 3")
    rb, sh = (1, 3) if mode == "8x4" else (2, 2)
    a.e(f"""s_and_b32 s{S_I}, s{S_TMP}, {(1<<rb)-1}
s_lshl_b32 s{S_I}, s{S_I}, {sh}
s_and_b32 s{S_T3}, s{S_T2}, {(1<<sh)-1}
s_add_u32 s{S_I}, s{S_I}, s{S_T3}
s_lshr_b32 s{S_J}, s{S_TMP}, {rb}
s_lshl_b32 s{S_J}, s{S_J}, {5-sh}
s_lshr_b32 s{S_T3}, s{S_T2}, {sh}
s_add_u32 s{S_J}, s{S_J}, s{S_T3}""")

class Gemm:
    def __init__(self, name, T, strideX, strideW, NP, S, NS, NN, kperm, panel_byte):
        self.name, self.T = name, T
        self.strideX, self.strideW = strideX, strideW
        self.NP, self.S, self.NS, self.NN, self.kperm = NP, S, NS, NN, kperm
        self.panel_byte = panel_byte
        self.STAGE = 16384 + NP * 8192
        self.SCR = S * self.STAGE
        self.PX, self.PW = 4, 2 * NP
        self.P = self.PX + self.PW
        self.ACC = 0
        self.XA = self.ACC + NS * NN * 4
        self.XB = self.XA + NS * 4
        self.WA = self.XB + NS * 4
        self.WB = self.WA + NN * 4
        self.VEND = self.WB + NN * 4

    def loader_addr(self, a):
        sW = self.strideW
        a.e(f"""s_sub_u32 s{S_T4}, s{S_WAVE}, 4
v_and_b32 v1, 63, v0
v_lshrrev_b32 v8, 3, v1
v_and_b32 v9, 7, v1
v_lshrrev_b32 v10, 4, v1
s_lshl_b32 s{S_TMP}, s{S_T4}, 5
v_add_u32 v11, s{S_TMP}, v8""")
        if self.strideX is None:
            a.e(f"v_mul_lo_u32 v11, v11, s{S_STRX}\ns_lshl_b32 s{S_T2}, s{S_STRX}, 3")
        else:
            a.e(f"s_mov_b32 s{S_T2}, {self.strideX}\nv_mul_lo_u32 v11, v11, s{S_T2}\ns_mov_b32 s{S_T2}, {8*self.strideX}")
        for q in range(4):
            fx = (q & 1) << 2
            a.e(f"v_or_b32 v12, {fx}, v10\nv_xor_b32 v12, v12, v9\nv_lshl_add_u32 v{2+q}, v12, 4, v11")
            if q < 3: a.e(f"v_add_u32 v11, s{S_T2}, v11")
        a.e(f"""s_lshl_b32 s{S_TMP}, s{S_T4}, 4
v_add_u32 v11, s{S_TMP}, v8
s_mov_b32 s{S_T2}, {sW}
v_mul_lo_u32 v11, v11, s{S_T2}""")
        for qq in range(2):
            if self.kperm: a.e("v_and_b32 v12, 3, v10")
            else: a.e(f"v_and_b32 v12, 1, v10\nv_or_b32 v12, {qq << 1}, v12")
            a.e(f"v_lshlrev_b32 v12, 1, v12\nv_xor_b32 v12, v12, v9\nv_lshl_add_u32 v{6+qq}, v12, 4, v11")
            if qq == 0: a.e(f"v_add_u32 v11, {8*sW}, v11")
        a.e(f"s_lshl_b32 s{S_LX}, s{S_T4}, 12\ns_lshl_b32 s{S_LW}, s{S_T4}, 11")
        a.e(f"s_mov_b32 s{S_KX}, 0")
        for pn in range(self.NP):
            a.e(f"s_mov_b32 s{S_KW+pn}, {self.panel_byte[pn]}")
        a.e(f"s_mov_b32 s{S_SLOT}, 0")

    def issue_stage(self, a):
        a.e(f"s_add_u32 s{S_TMP}, s{S_SLOT}, s{S_LX}")
        for q in range(4):
            a.e(f"s_add_u32 m0, s{S_TMP}, {q*1024}\ns_nop 0")
            if not OPT.get("nodma"): a.e(f"buffer_load_dwordx4 v{2+q}, s[{SRD_X}:{SRD_X+3}], s{S_KX} offen lds")
        a.e(f"s_add_u32 s{S_TMP}, s{S_SLOT}, s{S_LW}")
        for pn in range(self.NP):
            for qq in range(2):
                a.e(f"s_add_u32 m0, s{S_TMP}, {16384 + pn*8192 + qq*1024}\ns_nop 0")
                if not OPT.get("nodma"): a.e(f"buffer_load_dwordx4 v{6+qq}, s[{SRD_W}:{SRD_W+3}], s{S_KW+pn} offen lds")
        a.e(f"s_add_u32 s{S_KX}, s{S_KX}, 128")
        for pn in range(self.NP):
            a.e(f"s_add_u32 s{S_KW+pn}, s{S_KW+pn}, {64*self.strideW}")
        a.e(f"""s_add_u32 s{S_SLOT}, s{S_SLOT}, {self.STAGE}
s_cmp_eq_u32 s{S_SLOT}, {self.S*self.STAGE}
s_cselect_b32 s{S_SLOT}, 0, s{S_SLOT}""")

    def loader(self, a, side_issue=None, side_n=0, sideA=None, sideB=None):
        S, P = self.S, self.P
        self.loader_addr(a)
        self.issue_stage(a)
        if side_issue: side_issue(a)
        for st in range(1, S - 1):
            self.issue_stage(a)
        stamp(a, 4)
        a.e(f"s_waitcnt vmcnt({(S-2)*P + side_n})")
        stamp(a, 2)
        a.e("s_barrier")
        for t in range(S - 1):
            self.issue_stage(a)
            a.e(f"s_waitcnt vmcnt({(S-2)*P})\ns_barrier")
            if t == 0 and sideA: sideA(a)
            if t == 1 and sideB: sideB(a)
        lab = a.lab("ld")
        if self.T is None: a.e(f"s_sub_u32 s{S_CNT}, s{S_NT}, {2*S-2}")
        else: a.e(f"s_mov_b32 s{S_CNT}, {self.T - 2*S + 2}")
        a.e(f"{lab}:")
        self.issue_stage(a)
        a.e(f"s_waitcnt vmcnt({(S-2)*P})\ns_barrier")
        a.e(f"s_sub_u32 s{S_CNT}, s{S_CNT}, 1\ns_cmp_lg_u32 s{S_CNT}, 0\ns_cbranch_scc1 {lab}")
        for k in range(S - 1):
            rem = max(0, S - 3 - k)
            a.e(f"s_waitcnt vmcnt({rem*P})\ns_barrier")

    def acc(self, ts, tn): return self.ACC + (ts * self.NN + tn) * 4

    def reads(self, setsel, u, vxa, wtiles):
        X = self.XA if setsel == 0 else self.XB
        W = self.WA if setsel == 0 else self.WB
        r = []
        for ts in range(self.NS):
            r.append(f"ds_read_b128 v[{X+4*ts}:{X+4*ts+3}], v{vxa} offset:{ts*2048}")
        hs = 2048 if self.kperm else 512
        for tn in range(self.NN):
            areg, imm = wtiles[tn]
            for h in range(2):
                r.append(f"ds_read_b64_tr_b16 v[{W+4*tn+2*h}:{W+4*tn+2*h+1}], v{areg} offset:{imm + u*4096 + h*hs}")
        if OPT.get("noread"): return []
        if OPT.get("noxread"): r = r[self.NS:]
        if OPT.get("nowread"): r = r[:self.NS]
        return r

    def mfmas(self, setsel, orient):
        X = self.XA if setsel == 0 else self.XB
        W = self.WA if setsel == 0 else self.WB
        m = []
        for tn in range(self.NN):
            for ts in range(self.NS):
                c = self.acc(ts, tn)
                xs, ws = f"v[{X+4*ts}:{X+4*ts+3}]", f"v[{W+4*tn}:{W+4*tn+3}]"
                A_, B_ = (ws, xs) if orient[tn] == "ns" else (xs, ws)
                m.append(f"v_mfma_f32_16x16x32_bf16 v[{c}:{c+3}], {A_}, {B_}, v[{c}:{c+3}]")
        return m

    @staticmethod
    def weave(a, mf, fillers, per=2, head=0):
        k = 0
        for i, m in enumerate(mf):
            a.e(m)
            if i < head: continue
            for _ in range(per):
                if k < len(fillers):
                    if fillers[k] is not None: a.e(fillers[k])
                    k += 1
        while k < len(fillers):
            if fillers[k] is not None: a.e(fillers[k])
            k += 1

    def compute_loop(self, a, vx0, vx1, wregs, wtiles, orient, pre_barrier=None):
        S = self.S
        NS, NN = self.NS, self.NN
        for r in range(NS * NN * 4):
            a.e(f"v_mov_b32 v{self.ACC + r}, 0")
        a.e(f"s_mov_b32 s{S_SLOT}, 0")
        if self.T is None: a.e(f"s_mov_b32 s{S_CNT}, s{S_NT}")
        else: a.e(f"s_mov_b32 s{S_CNT}, {self.T}")
        if pre_barrier: pre_barrier(a)
        a.e("s_barrier")
        stamp(a, 2)
        for r in self.reads(0, 0, vx0, wtiles): a.e(r)
        lab = a.lab("cl")
        per = OPT.get("per", 1 if NS * NN >= 24 else 2)
        a.e(f".p2align 3\n{lab}:")
        a.e("s_waitcnt lgkmcnt(0)")
        rd = self.reads(1, 1, vx1, wtiles)
        sal = [f"s_add_u32 s{S_TMP}, s{S_SLOT}, {self.STAGE}", f"s_cmp_eq_u32 s{S_TMP}, {S*self.STAGE}",
               f"s_cselect_b32 s{S_TMP}, 0, s{S_TMP}", f"s_sub_u32 s{S_DELTA}, s{S_TMP}, s{S_SLOT}", f"s_mov_b32 s{S_SLOT}, s{S_TMP}"]
        upd = [f"v_add_u32 v{r}, s{S_DELTA}, v{r}" for r in [vx0, vx1] + wregs]
        nm = NS * NN
        if OPT.get("oldsched"):
            fill = rd + sal + upd
        else:
            fill = []
            rr = list(rd); ss = list(sal)
            while rr or ss:
                if rr: fill.append(rr.pop(0))
                if len(rd) * 1.0 / max(1, nm) < 1.0 or True:
                    if ss and len(fill) % 4 == 3: fill.append(ss.pop(0))
                if not rr:
                    fill += ss; ss = []
            fill += upd
        self.weave(a, self.mfmas(0, orient), fill, per)
        a.e("s_waitcnt lgkmcnt(0)")
        mf = self.mfmas(1, orient)
        nb = OPT.get("prebar", 1)
        for m in mf[:nb]: a.e(m)
        a.e("s_barrier")
        rd = self.reads(0, 0, vx0, wtiles)
        fill = list(rd) + [f"s_sub_u32 s{S_CNT}, s{S_CNT}, 1", f"s_cmp_lg_u32 s{S_CNT}, 0"]
        self.weave(a, mf[nb:], fill, per)
        a.e(f"s_cbranch_scc1 {lab}")
        a.e("s_waitcnt lgkmcnt(0)\ns_nop 7\ns_nop 1")
        stamp(a, 3)

    def x_addr(self, a, vx0, vx1, rowbase):
        t = VT
        a.e(f"""v_and_b32 v{vx1}, 15, v{VL}
v_add_u32 v{vx1}, {rowbase}, v{vx1}
v_lshlrev_b32 v{vx1}, 7, v{vx1}
v_bfe_u32 v{vx0}, v{VL}, 1, 3
v_lshrrev_b32 v{t}, 4, v{VL}
v_xor_b32 v{vx0}, v{vx0}, v{t}
v_lshl_add_u32 v{vx0}, v{vx0}, 4, v{vx1}
v_xor_b32 v{vx1}, 64, v{vx0}""")

    def w_lanebase(self, a, vd, vswz):
        t = VT
        sh = 2 if self.kperm else 3
        a.e(f"""v_lshrrev_b32 v{t}, 4, v{VL}
v_bfe_u32 v{t+1}, v{VL}, 2, 2
v_lshl_add_u32 v{vd}, v{t}, {sh}, v{t+1}
v_lshlrev_b32 v{vd}, 7, v{vd}
v_and_b32 v{t+2}, 3, v{VL}
v_lshl_add_u32 v{vd}, v{t+2}, 3, v{vd}
v_add_u32 v{vd}, 16384, v{vd}
v_and_b32 v{t}, 1, v{t}
v_lshlrev_b32 v{t}, 1, v{t}
v_lshrrev_b32 v{t+1}, 1, v{t+1}
v_or_b32 v{vswz}, v{t}, v{t+1}""")

class LnSide:
    def __init__(self, g, colmap):
        self.g, self.colmap = g, colmap
    def issue(self, a):
        a.e(f"""v_subrev_u32 v13, 256, v0
v_and_b32 v14, 127, v13
v_lshrrev_b32 v15, 7, v13
v_lshlrev_b32 v16, 3, v14
v_lshl_add_u32 v16, v15, 17, v16""")
        for p in range(8):
            a.e(f"s_mov_b32 s{S_T5}, {p*16384}\nbuffer_load_dwordx2 v[{20+2*p}:{21+2*p}], v16, s[{SRD_S}:{SRD_S+3}], s{S_T5} offen")
        self.colmap(a)
        for p in range(NCP):
            a.e(f"s_mov_b32 s{S_T5}, {p*self.ncols*4}\nbuffer_load_dword v{36+p}, v17, s[{SRD_T}:{SRD_T+3}], s{S_T5} offen")
    n = 8 + NCP
    def partA(self, a):
        SCR = self.g.SCR
        for p in range(1, 8):
            a.e(f"v_add_f32 v20, v20, v{20+2*p}\nv_add_f32 v21, v21, v{21+2*p}")
        a.e("v_add_f32 v36, v36, v37\nv_add_f32 v38, v38, v39\nv_add_f32 v36, v36, v38")
        a.e(f"v_lshlrev_b32 v18, 3, v13\nv_add_u32 v18, {SCR+2048}, v18\nds_write_b64 v18, v[20:21]")
        a.e(f"v_lshlrev_b32 v18, 2, v13\nv_add_u32 v18, {SCR+1024}, v18\nds_write_b32 v18, v36")
        a.e("s_waitcnt lgkmcnt(0)")
    def partB(self, a):
        SCR = self.g.SCR
        skip = a.lab("sb")
        a.e(f"s_cmp_ge_u32 s{S_WAVE}, 6\ns_cbranch_scc1 {skip}")
        a.e(f"""v_lshlrev_b32 v18, 3, v13
v_add_u32 v18, {SCR+2048}, v18
ds_read_b64 v[20:21], v18
ds_read_b64 v[22:23], v18 offset:1024
s_waitcnt lgkmcnt(0)
v_add_f32 v20, v20, v22
v_add_f32 v21, v21, v23
v_mul_f32 v20, {f2u(1.0/1024):#x}, v20
v_mul_f32 v21, {f2u(1.0/1024):#x}, v21
v_fma_f32 v21, -v20, v20, v21
v_max_f32 v21, 0, v21
v_add_f32 v21, {f2u(1e-5):#x}, v21
v_rsq_f32 v21, v21
v_sub_f32 v20, 0, v20
v_lshlrev_b32 v18, 2, v13
v_add_u32 v18, {SCR}, v18
ds_write_b32 v18, v20
ds_write_b32 v18, v21 offset:512
s_waitcnt lgkmcnt(0)
{skip}:""")

def emit_chains(a, chains):
    n = max(len(c) for c in chains)
    for st in range(n):
        for c in chains:
            if st < len(c):
                for ins in c[st]: a.e(ins)

def split_roles(a, lab_loader):
    a.e(f"s_cmp_ge_u32 s{S_WAVE}, 4\ns_cbranch_scc1 {lab_loader}")
    a.e(f"v_and_b32 v{VL}, 63, v0")

def body_res(a, lab):
    g = Gemm("res", None, None, 2048, 1, 6, 2, 4, True, [0])
    ld = a.lab("resld"); done = a.lab("resdone")
    a.e(f"{lab}:")
    split_roles(a, ld)
    VX0, VX1, VW, VSW = 236, 237, 232, 238
    RES = 96
    VO = 230
    a.e(f"s_lshl_b32 s{S_T4}, s{S_WAVE}, 5")
    g.x_addr(a, VX0, VX1, f"s{S_T4}")
    g.w_lanebase(a, VW, VSW)
    for sg in range(3, -1, -1):
        a.e(f"v_xor_b32 v{VT}, {sg}, v{VSW}\nv_lshl_add_u32 v{VW+sg}, v{VT}, 5, v{VW}")
    a.e(f"""v_and_b32 v{VT}, 15, v{VL}
v_add_u32 v{VT}, s{S_T4}, v{VT}
v_lshlrev_b32 v{VO}, 11, v{VT}
v_bfe_u32 v{VT+1}, v{VL}, 4, 1
v_lshlrev_b32 v{VT+1}, 1, v{VT+1}
v_lshrrev_b32 v{VT+2}, 5, v{VL}
v_or_b32 v{VT+1}, v{VT+1}, v{VT+2}
v_lshl_add_u32 v{VO}, v{VT+1}, 4, v{VO}
v_lshlrev_b32 v{VO+1}, 3, v{VT}
s_mov_b32 s{S_C0}, 32768""")
    for ts in range(2):
        for p in range(2):
            r = RES + (ts*2+p)*4
            so = f"s{S_C0}" if ts else "0"
            a.e(f"buffer_load_dwordx4 v[{r}:{r+3}], v{VO}, s[{SRD_R}:{SRD_R+3}], {so} offen offset:{p*64}")
    wt = [(VW + sg, 0) for sg in range(4)]
    g.compute_loop(a, VX0, VX1, [VW+i for i in range(4)], wt, ["ns"]*4)
    a.e("s_waitcnt vmcnt(0)")
    T = 112
    for ts in range(2):
        SUM, SQ = 128 + ts*4, 130 + ts*4
        a.e(f"v_mov_b32 v{SUM}, 0\nv_mov_b32 v{SUM+1}, 0\nv_mov_b32 v{SQ}, 0\nv_mov_b32 v{SQ+1}, 0")
        for p in range(2):
            c0, c1 = g.acc(ts, 2*p), g.acc(ts, 2*p+1)
            for r in range(4):
                a.e(f"v_permlane16_swap_b32 v{c0+r}, v{c1+r}")
            R = RES + (ts*2+p)*4
            for q in range(4):
                a.e(f"v_lshlrev_b32 v{T+2*q}, 16, v{R+q}\nv_and_b32 v{T+2*q+1}, 0xffff0000, v{R+q}")
            for q in range(4):
                c = (c0 if q < 2 else c1) + 2*(q & 1)
                a.e(f"v_pk_add_f32 v[{T+2*q}:{T+2*q+1}], v[{T+2*q}:{T+2*q+1}], v[{c}:{c+1}]")
            for q in range(4):
                a.e(f"v_pk_add_f32 v[{SUM}:{SUM+1}], v[{SUM}:{SUM+1}], v[{T+2*q}:{T+2*q+1}]")
                a.e(f"v_pk_fma_f32 v[{SQ}:{SQ+1}], v[{T+2*q}:{T+2*q+1}], v[{T+2*q}:{T+2*q+1}], v[{SQ}:{SQ+1}]")
            O = 120 + p*4
            for q in range(4):
                a.e(f"v_cvt_pk_bf16_f32 v{O+q}, v{T+2*q}, v{T+2*q+1}")
            so = f"s{S_C0}" if ts else "0"
            a.e(f"buffer_store_dwordx4 v[{O}:{O+3}], v{VO}, s[{SRD_O}:{SRD_O+3}], {so} offen offset:{p*64} sc1")
        a.e(f"v_add_f32 v{SUM}, v{SUM}, v{SUM+1}\nv_add_f32 v{SUM+1}, v{SQ}, v{SQ+1}")
        for sw in ("v_permlane16_swap_b32", "v_permlane32_swap_b32"):
            a.e(f"v_mov_b32 v{SQ}, v{SUM}\nv_mov_b32 v{SQ+1}, v{SUM+1}\ns_nop 1")
            a.e(f"{sw} v{SUM}, v{SQ}\n{sw} v{SUM+1}, v{SQ+1}\ns_nop 1")
            a.e(f"v_add_f32 v{SUM}, v{SUM}, v{SQ}\nv_add_f32 v{SUM+1}, v{SUM+1}, v{SQ+1}")
    a.e("s_mov_b64 exec, 0xffff")
    a.e(f"buffer_store_dwordx2 v[128:129], v{VO+1}, s[{SRD_S}:{SRD_S+3}], 0 offen sc1")
    a.e(f"buffer_store_dwordx2 v[132:133], v{VO+1}, s[{SRD_S}:{SRD_S+3}], 0 offen offset:128 sc1")
    a.e("s_mov_b64 exec, -1")
    stamp(a, 5)
    if PROF: a.e("s_waitcnt vmcnt(0)")
    stamp(a, 6); stamp_rt(a, 7); stamp_flush(a, 0)
    a.e("s_endpgm")
    a.e(f"{ld}:")
    g.loader(a)
    stamp(a, 3); stamp_rt(a, 7); stamp_flush(a, 1)
    a.e("s_endpgm")
    return g

def stub_res(a, name, body, l, which):
    done = a.lab("done")
    a.e(f".globl {name}\n.p2align 8\n.type {name},@function\n{name}:")
    load_args(a, done, 1 + 5*l + (2 if which == "wo" else 4))
    wg_map(a, "4x8")
    if which == "wo":
        a.e(f"s_mov_b32 s{S_STRX}, 2048\ns_mov_b32 s{S_NT}, 16")
        a.e(f"s_lshl_b32 s{S_T2}, s{S_I}, 18")
        srd(a, SRD_X, S_WS, [WS_O[l], f"s{S_T2}"], 128*2048)
        a.e(f"s_lshl_b32 s{S_T3}, s{S_J}, 7")
        srd(a, SRD_W, S_WO, [f"s{S_T3}"], D*D*2)
        res = (S_X, 0) if l == 0 else (S_WS, WS_X2)
        out = (S_WS, WS_X1[l]); stat = WS_STAT[1 if l == 0 else 3]
    else:
        a.e(f"s_mov_b32 s{S_STRX}, 7168\ns_mov_b32 s{S_NT}, 56")
        a.e(f"s_mul_i32 s{S_T2}, s{S_I}, {128*7168}")
        srd(a, SRD_X, S_WS, [WS_H[l], f"s{S_T2}"], 128*7168)
        a.e(f"s_lshl_b32 s{S_T3}, s{S_J}, 7")
        srd(a, SRD_W, S_W2, [f"s{S_T3}"], F*D*2)
        res = (S_WS, WS_X1[l])
        out = (S_WS, WS_X2) if l == 0 else (S_OUT, 0)
        stat = WS_STAT[2] if l == 0 else None
    a.e(f"s_lshl_b32 s{S_T2}, s{S_I}, 18\ns_add_u32 s{S_T2}, s{S_T2}, s{S_T3}")
    a.e(f"s_sub_u32 s{S_T4}, {XBYTES}, s{S_T2}")
    srd(a, SRD_R, res[0], [res[1], f"s{S_T2}"], f"s{S_T4}")
    srd(a, SRD_O, out[0], [out[1], f"s{S_T2}"], f"s{S_T4}")
    a.e(f"s_lshl_b32 s{S_T2}, s{S_J}, 14\ns_lshl_b32 s{S_T3}, s{S_I}, 10\ns_add_u32 s{S_T2}, s{S_T2}, s{S_T3}")
    if stat is not None: srd(a, SRD_S, S_WS, [stat, f"s{S_T2}"], 1024)
    else: srd(a, SRD_S, S_WS, [WS_STAT[0]], 0)
    a.e(f"s_branch {body}\n{done}:\ns_endpgm")

def body_w1(a, lab):
    g = Gemm("w1", 16, 2048, 7168, 4, 3, 4, 7, False, [0, 128, 256, 384])
    ld = a.lab("w1ld")
    a.e(f"{lab}:")
    split_roles(a, ld)
    VX0, VX1, VW, VSW, VB = 236, 237, 224, 238, 239
    a.e(f"s_lshr_b32 s{S_T4}, s{S_WAVE}, 1\ns_lshl_b32 s{S_T4}, s{S_T4}, 6")
    a.e(f"s_and_b32 s{S_T5}, s{S_WAVE}, 1")
    g.x_addr(a, VX0, VX1, f"s{S_T4}")
    g.w_lanebase(a, VB, VSW)
    a.e(f"s_and_b32 s{S_T2}, s{S_J}, 1\ns_lshl_b32 s{S_T2}, s{S_T2}, 1")
    VCS = 216
    for tn in range(7):
        st = 72 + tn
        a.e(f"s_cmp_eq_u32 s{S_T5}, 0\ns_cselect_b32 s{st}, {tn}, {8+tn if tn < 6 else 7}\ns_add_u32 s{st}, s{st}, s{S_T2}")
        a.e(f"s_and_b32 s{S_TMP}, s{st}, 3\ns_lshr_b32 s{S_T3}, s{st}, 2\ns_lshl_b32 s{S_T3}, s{S_T3}, 13")
        a.e(f"v_xor_b32 v{VT}, s{S_TMP}, v{VSW}\nv_lshl_add_u32 v{VT}, v{VT}, 5, v{VB}\nv_add_u32 v{VW+tn}, s{S_T3}, v{VT}")
    wt = [(VW + tn, 0) for tn in range(7)]
    g.compute_loop(a, VX0, VX1, [VW+i for i in range(7)], wt, ["ns"]*7)
    SCR = g.SCR
    CS = 112
    a.e(f"v_lshrrev_b32 v{VT}, 4, v{VL}\nv_lshlrev_b32 v{VT}, 4, v{VT}\nv_add_u32 v{VT}, {SCR+1024}, v{VT}")
    for tn in range(7):
        a.e(f"s_lshl_b32 s{S_TMP}, s{72+tn}, 6\nv_add_u32 v{VT+1}, s{S_TMP}, v{VT}\nds_read_b128 v[{CS+4*tn}:{CS+4*tn+3}], v{VT+1}")
    a.e(f"v_and_b32 v{VT}, 15, v{VL}\nv_add_u32 v{VT}, s{S_T4}, v{VT}\nv_lshlrev_b32 v{VT+1}, 2, v{VT}\nv_add_u32 v{VT+1}, {SCR}, v{VT+1}")
    for ts in range(4):
        a.e(f"ds_read_b32 v{140+4*ts}, v{VT+1} offset:{ts*64}\nds_read_b32 v{141+4*ts}, v{VT+1} offset:{512+ts*64}")
    VO, VS = 230, 231
    a.e(f"""s_mov_b32 s{S_TMP}, 7168
v_mul_lo_u32 v{VO}, v{VT}, s{S_TMP}
v_lshrrev_b32 v{VT+2}, 4, v{VL}
v_lshl_add_u32 v{VO}, v{VT+2}, 4, v{VO}
s_mul_i32 s{S_T2}, s{S_J}, 7
s_add_u32 s{S_T3}, s{S_T2}, 3
s_lshl_b32 s{S_T3}, s{S_T3}, 6
s_lshl_b32 s{S_TMP}, s{S_T5}, 3
s_add_u32 s{S_T3}, s{S_T3}, s{S_TMP}
v_add_u32 v{VS}, s{S_T3}, v{VO}
s_lshl_b32 s{S_TMP}, s{S_T5}, 2
s_add_u32 s{S_T2}, s{S_T2}, s{S_TMP}
s_lshl_b32 s{S_T2}, s{S_T2}, 6
v_add_u32 v{VO}, s{S_T2}, v{VO}
s_waitcnt lgkmcnt(0)""")
    S_TSO = 72
    for ts in range(4): a.e(f"s_mov_b32 s{S_TSO+ts}, {ts*16*7168}")
    for ts in range(4):
        a.e(f"v_mul_f32 v{142+4*ts}, {LOG2E ^ 0x80000000:#x}, v{141+4*ts}")
    T = 160
    def silu_chain(ts, tn, h, t, dst):
        P, Q = 140+4*ts, 142+4*ts
        cc, cs = g.acc(ts, tn) + 2*h, CS + 4*tn + 2*h
        return [[f"v_pk_fma_f32 v[{t}:{t+1}], v[{cs}:{cs+1}], v[{P}:{P+1}], v[{cc}:{cc+1}] op_sel_hi:[1,0,1]"],
                [f"v_pk_mul_f32 v[{t+2}:{t+3}], v[{t}:{t+1}], v[{Q}:{Q+1}] op_sel_hi:[1,0]"],
                [f"v_exp_f32 v{t+2}, v{t+2}"], [f"v_exp_f32 v{t+3}, v{t+3}"],
                [f"v_pk_mul_f32 v[{t}:{t+1}], v[{t}:{t+1}], v[{P}:{P+1}] op_sel:[0,1] op_sel_hi:[1,1]"],
                [f"v_pk_add_f32 v[{t+2}:{t+3}], v[{t+2}:{t+3}], 1.0 op_sel_hi:[1,0]"],
                [f"v_rcp_f32 v{t+2}, v{t+2}"], [f"v_rcp_f32 v{t+3}, v{t+3}"],
                ["s_nop 0"] if False else [],
                [f"v_pk_mul_f32 v[{t}:{t+1}], v[{t}:{t+1}], v[{t+2}:{t+3}]"],
                [f"v_cvt_pk_bf16_f32 v{dst}, v{t}, v{t+1}"]]
    grp = 0
    for tsp in range(2):
        for ts in (2*tsp, 2*tsp+1):
            so = 72 + ts if False else None
            for pr in range(3):
                O = 200 + (grp % 2) * 4; grp += 1
                ch = [silu_chain(ts, 2*pr + (q >> 1), q & 1, T + 4*q + (grp % 2)*16, O + q) for q in range(4)]
                emit_chains(a, ch)
                a.e(f"buffer_store_dwordx4 v[{O}:{O+3}], v{VO}, s[{SRD_O}:{SRD_O+3}], s{S_TSO+ts} offen offset:{pr*64} sc1")
        O = 200 + (grp % 2) * 4; grp += 1
        ch = [silu_chain(2*tsp + (q >> 1), 6, q & 1, T + 4*q + (grp % 2)*16, O + q) for q in range(4)]
        emit_chains(a, ch)
        for k in range(2):
            a.e(f"buffer_store_dwordx2 v[{O+2*k}:{O+2*k+1}], v{VS}, s[{SRD_O}:{SRD_O+3}], s{S_TSO+2*tsp+k} offen sc1")
    stamp(a, 5)
    if PROF: a.e("s_waitcnt vmcnt(0)")
    stamp(a, 6); stamp_rt(a, 7); stamp_flush(a, 0)
    a.e("s_endpgm")
    a.e(f"{ld}:")
    def colmap(a):
        a.e("v_lshlrev_b32 v17, 2, v13")
    side = LnSide(g, colmap); side.ncols = F
    g.loader(a, side.issue, side.n, side.partA, side.partB)
    stamp(a, 3); stamp_rt(a, 7); stamp_flush(a, 1)
    a.e("s_endpgm")
    return g

def stub_w1(a, name, body, l):
    done = a.lab("done")
    a.e(f".globl {name}\n.p2align 8\n.type {name},@function\n{name}:")
    load_args(a, done, 1 + 5*l + 3)
    wg_map(a, "8x4")
    a.e(f"s_lshl_b32 s{S_T2}, s{S_I}, 18")
    srd(a, SRD_X, S_WS, [WS_X1[l], f"s{S_T2}"], 128*2048)
    a.e(f"s_mul_i32 s{S_T3}, s{S_J}, 224\ns_and_b32 s{S_T4}, s{S_J}, 1\ns_lshl_b32 s{S_T4}, s{S_T4}, 5\ns_sub_u32 s{S_T3}, s{S_T3}, s{S_T4}")
    a.e(f"s_lshl_b32 s{S_T4}, s{S_T3}, 1\ns_sub_u32 s{S_T5}, {D*F*2}, s{S_T4}")
    srd(a, SRD_W, S_W1, [f"s{S_T4}"], f"s{S_T5}")
    a.e(f"s_lshl_b32 s{S_T4}, s{S_T3}, 2\ns_sub_u32 s{S_T5}, {NCP*F*4}, s{S_T4}")
    srd(a, SRD_T, S_WS, [WS_CSW, f"s{S_T4}"], f"s{S_T5}")
    a.e(f"s_mul_i32 s{S_T2}, s{S_I}, {128*7168}")
    srd(a, SRD_O, S_WS, [WS_H[l], f"s{S_T2}"], 128*7168)
    a.e(f"s_lshl_b32 s{S_T2}, s{S_I}, 10\ns_sub_u32 s{S_T5}, {STATBYTES}, s{S_T2}")
    srd(a, SRD_S, S_WS, [WS_STAT[1 if l == 0 else 3], f"s{S_T2}"], f"s{S_T5}")
    a.e(f"s_branch {body}\n{done}:\ns_endpgm")

def body_qkv(a, lab, S=3):
    g = Gemm("qkv", 16, 2048, 6144, 3, S, 4, 6, False, [0, 2048, 4096])
    ld = a.lab("qkvld")
    a.e(f"{lab}:")
    split_roles(a, ld)
    VX0, VX1, VW, VSW, VB = 236, 237, 224, 238, 239
    a.e(f"s_lshr_b32 s{S_T4}, s{S_WAVE}, 1\ns_lshl_b32 s{S_T4}, s{S_T4}, 6")
    a.e(f"s_and_b32 s{S_T5}, s{S_WAVE}, 1")
    g.x_addr(a, VX0, VX1, f"s{S_T4}")
    g.w_lanebase(a, VB, VSW)
    for t in range(2):
        a.e(f"s_lshl_b32 s{S_TMP}, s{S_T5}, 1\ns_add_u32 s{S_TMP}, s{S_TMP}, {t}")
        a.e(f"v_xor_b32 v{VT}, s{S_TMP}, v{VSW}\nv_lshl_add_u32 v{VW+t}, v{VT}, 5, v{VB}")
    wt = [(VW + (tn & 1), (tn >> 1) * 8192) for tn in range(6)]
    g.compute_loop(a, VX0, VX1, [VW, VW+1], wt, ["ns", "ns", "sn", "sn", "sn", "sn"])
    SCR = g.SCR
    CSQ, CSK = 96, 104
    a.e(f"""v_lshrrev_b32 v{VT}, 4, v{VL}
v_and_b32 v{VT+1}, 15, v{VL}
s_lshl_b32 s{S_TMP}, s{S_T5}, 7
v_lshlrev_b32 v{VT+2}, 4, v{VT}
v_add_u32 v{VT+2}, s{S_TMP}, v{VT+2}
v_add_u32 v{VT+2}, {SCR+1024}, v{VT+2}
ds_read_b128 v[{CSQ}:{CSQ+3}], v{VT+2}
ds_read_b128 v[{CSQ+4}:{CSQ+7}], v{VT+2} offset:64
v_lshlrev_b32 v{VT+2}, 2, v{VT+1}
v_add_u32 v{VT+2}, s{S_TMP}, v{VT+2}
v_add_u32 v{VT+2}, {SCR+1024}, v{VT+2}
ds_read_b32 v{CSK}, v{VT+2} offset:256
ds_read_b32 v{CSK+1}, v{VT+2} offset:320
ds_read_b32 v{CSK+2}, v{VT+2} offset:512
ds_read_b32 v{CSK+3}, v{VT+2} offset:576""")
    a.e(f"v_add_u32 v{VT+3}, s{S_T4}, v{VT+1}\nv_lshlrev_b32 v{VT+4}, 2, v{VT+3}\nv_add_u32 v{VT+4}, {SCR}, v{VT+4}")
    for ts in range(4):
        a.e(f"ds_read_b32 v{108+4*ts}, v{VT+4} offset:{ts*64}\nds_read_b32 v{109+4*ts}, v{VT+4} offset:{512+ts*64}")
    VKS = 229
    a.e(f"v_lshlrev_b32 v{VKS}, 2, v{VT}\nv_add_u32 v{VKS}, s{S_T4}, v{VKS}\nv_lshlrev_b32 v{VKS}, 2, v{VKS}\nv_add_u32 v{VKS}, {SCR}, v{VKS}")
    VO = 230
    a.e(f"""v_lshlrev_b32 v{VO}, 11, v{VT+3}
v_lshl_add_u32 v{VO}, v{VT}, 4, v{VO}
s_lshl_b32 s{S_TMP}, s{S_J}, 1
s_add_u32 s{S_TMP}, s{S_TMP}, s{S_T5}
s_lshl_b32 s{S_T2}, s{S_TMP}, 6
v_add_u32 v{VO}, s{S_T2}, v{VO}
s_mul_i32 s{S_T3}, s{S_TMP}, {KVREC}
s_mov_b32 s{S_C0}, 0
s_mov_b32 s{S_C1}, {f2u(1e-6):#x}
v_mov_b32 v222, s{S_C1}
s_waitcnt lgkmcnt(0)""")
    for ts in range(4):
        a.e(f"v_mul_f32 v{110+4*ts}, {LOG2E:#x}, v{109+4*ts}")
    T = 124
    def phi_pair(src, cs, cs_b, P, Pb, Q, Qb, t, dst):
        pass
    def phi_chain(first, Qop, Pop, t, dst):
        return [[first],
                [f"v_pk_mul_f32 v[{t+2}:{t+3}], v[{t}:{t+1}], {Qop}"],
                [f"v_exp_f32 v{t+2}, v{t+2} clamp"], [f"v_exp_f32 v{t+3}, v{t+3} clamp"],
                [f"v_pk_fma_f32 v[{t}:{t+1}], v[{t}:{t+1}], {Pop}"],
                [f"v_max_f32 v{t}, v222, v{t}"], [f"v_max_f32 v{t+1}, v222, v{t+1}"],
                [f"v_pk_add_f32 v[{t}:{t+1}], v[{t}:{t+1}], v[{t+2}:{t+3}]"],
                [f"v_cvt_pk_bf16_f32 v{dst}, v{t}, v{t+1}"]]
    for ts in range(4):
        P, Q = 108+4*ts, 110+4*ts
        O = 200 + (ts % 2) * 4
        ch = []
        for tq in range(2):
            for h in range(2):
                t = T + (tq*2+h) * 4
                cc, cs = g.acc(ts, tq) + 2*h, CSQ + 4*tq + 2*h
                ch.append(phi_chain(f"v_pk_fma_f32 v[{t}:{t+1}], v[{cs}:{cs+1}], v[{P}:{P+1}], v[{cc}:{cc+1}] op_sel_hi:[1,0,1]",
                                    f"v[{Q}:{Q+1}] op_sel_hi:[1,0]",
                                    f"v[{P}:{P+1}], v[222:223] op_sel:[0,1,0] op_sel_hi:[1,1,0]", t, O + tq*2 + h))
        emit_chains(a, ch)
        a.e(f"buffer_store_dwordx4 v[{O}:{O+3}], v{VO}, s[{SRD_O}:{SRD_O+3}], s{S_C0} offen sc1")
        if ts < 3: a.e(f"s_add_u32 s{S_C0}, s{S_C0}, {16*2048}")
    stamp(a, 4)
    PK, PV = 148, 164
    NMs = [180, 192]
    a.e(f"ds_read_b128 v[180:183], v{VKS}\nds_read_b128 v[184:187], v{VKS} offset:512")
    for ts in range(4):
        u, hf = ts >> 1, ts & 1
        NM = NMs[ts & 1]; RS, RL = NM + 4, NM + 8
        a.e("s_waitcnt lgkmcnt(0)")
        if ts < 3:
            nn = NMs[(ts+1) & 1]
            a.e(f"ds_read_b128 v[{nn}:{nn+3}], v{VKS} offset:{(ts+1)*64}\nds_read_b128 v[{nn+4}:{nn+7}], v{VKS} offset:{512+(ts+1)*64}")
        for r in range(4):
            a.e(f"v_mul_f32 v{RL+r}, {LOG2E:#x}, v{RS+r}")
        ch = []
        for tk in range(2):
            cs = CSK + tk; csp, sel = (cs & ~1), (cs & 1)
            for h in range(2):
                t = T + (tk*2+h) * 4
                cc = g.acc(ts, 2 + tk) + 2*h
                ch.append(phi_chain(f"v_pk_fma_f32 v[{t}:{t+1}], v[{csp}:{csp+1}], v[{NM+2*h}:{NM+2*h+1}], v[{cc}:{cc+1}] op_sel:[{sel},0,0] op_sel_hi:[{sel},1,1]",
                                    f"v[{RL+2*h}:{RL+2*h+1}]",
                                    f"v[{RS+2*h}:{RS+2*h+1}], v[222:223] op_sel_hi:[1,1,0]", t, PK + (tk*2+u)*4 + hf*2 + h))
        for tv in range(2):
            cs = CSK + 2 + tv; csp, sel = (cs & ~1), (cs & 1)
            for h in range(2):
                t = 204 + (tv*2+h) * 2 + 4
                cc = g.acc(ts, 4 + tv) + 2*h
                ch.append([[f"v_pk_fma_f32 v[{t}:{t+1}], v[{csp}:{csp+1}], v[{NM+2*h}:{NM+2*h+1}], v[{cc}:{cc+1}] op_sel:[{sel},0,0] op_sel_hi:[{sel},1,1]"],
                           [], [],
                           [f"v_pk_mul_f32 v[{t}:{t+1}], v[{t}:{t+1}], v[{RS+2*h}:{RS+2*h+1}]"],
                           [], [],
                           [f"v_cvt_pk_bf16_f32 v{PV + (tv*2+u)*4 + hf*2 + h}, v{t}, v{t+1}"]])
        emit_chains(a, ch)
    KV, Z, ONE = 0, 16, 24
    for r in range(4): a.e(f"v_mov_b32 v{ONE+r}, 0x3f803f80")
    a.e("s_nop 1")
    for u in range(2):
        for tv in range(2):
            for tk in range(2):
                d = KV + (tv*2+tk)*4
                cin = f"v[{d}:{d+3}]" if u else "0"
                a.e(f"v_mfma_f32_16x16x32_bf16 v[{d}:{d+3}], v[{PK+(tk*2+u)*4}:{PK+(tk*2+u)*4+3}], v[{PV+(tv*2+u)*4}:{PV+(tv*2+u)*4+3}], {cin}")
        for tk in range(2):
            d = Z + tk*4
            cin = f"v[{d}:{d+3}]" if u else "0"
            a.e(f"v_mfma_f32_16x16x32_bf16 v[{d}:{d+3}], v[{PK+(tk*2+u)*4}:{PK+(tk*2+u)*4+3}], v[{ONE}:{ONE+3}], {cin}")
    a.e("s_nop 7\ns_nop 1")
    other = a.lab("wr1"); fin = a.lab("fin")
    a.e(f"s_lshl_b32 s{S_TMP}, s{S_T5}, 13\nv_lshlrev_b32 v{VT}, 4, v{VL}\nv_add_u32 v{VT}, s{S_TMP}, v{VT}")
    a.e(f"s_cmp_ge_u32 s{S_WAVE}, 2\ns_cbranch_scc0 {other}")
    for q in range(6):
        a.e(f"ds_write_b128 v{VT}, v[{4*q}:{4*q+3}] offset:{q*1024}")
    a.e(f"s_waitcnt lgkmcnt(0)\ns_barrier\ns_branch {fin}")
    a.e(f"{other}:\ns_barrier")
    for q in range(6):
        a.e(f"ds_read_b128 v[{32+4*q}:{35+4*q}], v{VT} offset:{q*1024}")
    a.e("s_waitcnt lgkmcnt(0)")
    for q in range(12):
        a.e(f"v_pk_add_f32 v[{2*q}:{2*q+1}], v[{2*q}:{2*q+1}], v[{32+2*q}:{33+2*q}]")
    a.e(f"v_lshlrev_b32 v{VT}, 5, v{VL}")
    for tv in range(2):
        for hf in range(2):
            a.e(f"buffer_store_dwordx4 v[{tv*8+hf*4}:{tv*8+hf*4+3}], v{VT}, s[{SRD_R}:{SRD_R+3}], s{S_T3} offen offset:{tv*2048+hf*16} sc1")
    a.e(f"""v_lshrrev_b32 v{VT}, 4, v{VL}
v_lshlrev_b32 v{VT}, 5, v{VT}
v_add_u32 v{VT}, 4096, v{VT}
s_mov_b32 exec_lo, 0x00010001
s_mov_b32 exec_hi, 0x00010001
buffer_store_dwordx4 v[16:19], v{VT}, s[{SRD_R}:{SRD_R+3}], s{S_T3} offen sc1
buffer_store_dwordx4 v[20:23], v{VT}, s[{SRD_R}:{SRD_R+3}], s{S_T3} offen offset:16 sc1""")
    a.e("s_mov_b64 exec, -1")
    stamp(a, 5)
    if PROF: a.e("s_waitcnt vmcnt(0)")
    stamp(a, 6); stamp_rt(a, 7); stamp_flush(a, 0)
    a.e(f"{fin}:\ns_endpgm")
    a.e(f"{ld}:")
    def colmap(a):
        a.e("v_lshrrev_b32 v17, 6, v13\nv_lshlrev_b32 v17, 12, v17\nv_and_b32 v19, 63, v13\nv_lshl_add_u32 v17, v19, 2, v17")
    side = LnSide(g, colmap); side.ncols = 3 * D
    g.loader(a, side.issue, side.n, side.partA, side.partB)
    a.e("s_barrier")
    stamp(a, 3); stamp_rt(a, 7); stamp_flush(a, 1)
    a.e("s_endpgm")
    return g

def stub_qkv(a, name, body, l):
    done = a.lab("done")
    a.e(f".globl {name}\n.p2align 8\n.type {name},@function\n{name}:")
    load_args(a, done, 1 + 5*l + 0)
    wg_map(a, "8x4")
    a.e(f"s_lshl_b32 s{S_T2}, s{S_I}, 18")
    if l == 0: srd(a, SRD_X, S_X, [f"s{S_T2}"], 128*2048)
    else: srd(a, SRD_X, S_WS, [WS_X2, f"s{S_T2}"], 128*2048)
    srd(a, SRD_O, S_WS, [WS_PQ[l], f"s{S_T2}"], 128*2048)
    a.e(f"s_lshl_b32 s{S_T3}, s{S_J}, 7\ns_sub_u32 s{S_T5}, {D*3*D*2}, s{S_T3}")
    srd(a, SRD_W, S_WQKV, [f"s{S_T3}"], f"s{S_T5}")
    a.e(f"s_lshl_b32 s{S_T3}, s{S_J}, 8\ns_sub_u32 s{S_T5}, {NCP*3*D*4}, s{S_T3}")
    srd(a, SRD_T, S_WS, [WS_CSQ, f"s{S_T3}"], f"s{S_T5}")
    a.e(f"s_mul_i32 s{S_T2}, s{S_I}, {32*KVREC}")
    srd(a, SRD_R, S_WS, [WS_KVP[l], f"s{S_T2}"], 32*KVREC)
    a.e(f"s_lshl_b32 s{S_T2}, s{S_I}, 10\ns_sub_u32 s{S_T5}, {STATBYTES}, s{S_T2}")
    srd(a, SRD_S, S_WS, [WS_STAT[0 if l == 0 else 2], f"s{S_T2}"], f"s{S_T5}")
    a.e(f"s_branch {body}\n{done}:\ns_endpgm")

def body_att(a, lab):
    a.e(f"{lab}:")
    a.e(f"v_and_b32 v{VL}, 63, v0")
    a.e(f"""v_and_b32 v1, 15, v{VL}
s_lshl_b32 s{S_T4}, s{S_WAVE}, 6
v_add_u32 v1, s{S_T4}, v1
v_lshlrev_b32 v1, 11, v1
v_lshrrev_b32 v2, 4, v{VL}
v_lshl_add_u32 v1, v2, 4, v1
s_lshl_b32 s{S_TMP}, s{S_J}, 6
v_add_u32 v1, s{S_TMP}, v1
v_lshlrev_b32 v3, 5, v{VL}
v_lshlrev_b32 v4, 5, v2
v_add_u32 v4, 4096, v4""")
    a.e(f"s_mul_i32 s{S_T2}, s{S_WAVE}, {4*32*KVREC}")
    for b in range(4):
        R = 32 + 24*b
        if b: a.e(f"s_add_u32 s{S_T2}, s{S_T2}, {32*KVREC}")
        for tv in range(2):
            for hf in range(2):
                a.e(f"buffer_load_dwordx4 v[{R+tv*8+hf*4}:{R+tv*8+hf*4+3}], v3, s[{SRD_R}:{SRD_R+3}], s{S_T2} offen offset:{tv*2048+hf*16}")
        for hf in range(2):
            a.e(f"buffer_load_dwordx4 v[{R+16+hf*4}:{R+16+hf*4+3}], v4, s[{SRD_R}:{SRD_R+3}], s{S_T2} offen offset:{hf*16}")
    for ts in range(4):
        a.e(f"s_mov_b32 s{S_TMP}, {ts*16*2048}\nbuffer_load_dwordx4 v[{8+4*ts}:{11+4*ts}], v1, s[{SRD_X}:{SRD_X+3}], s{S_TMP} offen")
    a.e("s_waitcnt vmcnt(4)")
    stamp(a, 2)
    for b in range(1, 4):
        for q in range(12):
            a.e(f"v_pk_add_f32 v[{32+2*q}:{33+2*q}], v[{32+2*q}:{33+2*q}], v[{32+24*b+2*q}:{33+24*b+2*q}]")
    a.e(f"s_mul_i32 s{S_TMP}, s{S_WAVE}, 6144\nv_lshlrev_b32 v5, 4, v{VL}\nv_add_u32 v6, s{S_TMP}, v5")
    for q in range(6):
        a.e(f"ds_write_b128 v6, v[{32+4*q}:{35+4*q}] offset:{q*1024}")
    a.e("s_waitcnt lgkmcnt(0)\ns_barrier")
    for w in range(4):
        for q in range(6):
            a.e(f"ds_read_b128 v[{32+24*w+4*q}:{35+24*w+4*q}], v5 offset:{w*6144+q*1024}")
    a.e("s_waitcnt lgkmcnt(0)")
    for w in range(1, 4):
        for q in range(12):
            a.e(f"v_pk_add_f32 v[{32+2*q}:{33+2*q}], v[{32+2*q}:{33+2*q}], v[{32+24*w+2*q}:{33+24*w+2*q}]")
    for t in range(3):
        for q in range(4):
            a.e(f"v_cvt_pk_bf16_f32 v{130+4*t+q}, v{32+8*t+2*q}, v{33+8*t+2*q}")
    a.e("s_waitcnt vmcnt(0)\ns_nop 1")
    stamp(a, 3)
    for ts in range(4):
        for t in range(3):
            d = 144 + ts*12 + t*4
            a.e(f"v_mfma_f32_16x16x32_bf16 v[{d}:{d+3}], v[{130+4*t}:{133+4*t}], v[{8+4*ts}:{11+4*ts}], 0")
    a.e("s_nop 7")
    for ts in range(4):
        d = 144 + ts*12
        a.e(f"v_add_f32 v{d+8}, {f2u(1e-6):#x}, v{d+8}\nv_rcp_f32 v{d+8}, v{d+8}\ns_nop 0")
        for q in range(4):
            a.e(f"v_pk_mul_f32 v[{d+2*q}:{d+2*q+1}], v[{d+2*q}:{d+2*q+1}], v[{d+8}:{d+9}] op_sel_hi:[1,0]")
        for q in range(4):
            a.e(f"v_cvt_pk_bf16_f32 v{200+4*ts+q}, v{d+2*q}, v{d+2*q+1}")
        a.e(f"s_mov_b32 s{S_TMP}, {ts*16*2048}\nbuffer_store_dwordx4 v[{200+4*ts}:{203+4*ts}], v1, s[{SRD_O}:{SRD_O+3}], s{S_TMP} offen sc1")
    stamp(a, 5)
    if PROF: a.e("s_waitcnt vmcnt(0)")
    stamp(a, 6); stamp_rt(a, 7); stamp_flush(a, 0)
    a.e("s_endpgm")

def stub_att(a, name, body, l):
    done = a.lab("done")
    a.e(f".globl {name}\n.p2align 8\n.type {name},@function\n{name}:")
    load_args(a, done, 1 + 5*l + 1)
    a.e(f"s_and_b32 s{S_J}, s2, 31\ns_lshr_b32 s{S_I}, s2, 5")
    a.e(f"s_lshl_b32 s{S_T2}, s{S_I}, 19")
    srd(a, SRD_X, S_WS, [WS_PQ[l], f"s{S_T2}"], 256*2048)
    srd(a, SRD_O, S_WS, [WS_O[l], f"s{S_T2}"], 256*2048)
    a.e(f"s_mul_i32 s{S_T2}, s{S_J}, {KVREC}\ns_sub_u32 s{S_T5}, {16*32*KVREC}, s{S_T2}")
    srd(a, SRD_R, S_WS, [WS_KVP[l], f"s{S_T2}"], f"s{S_T5}")
    a.e(f"s_branch {body}\n{done}:\ns_endpgm")

def kernel_prep(a, name):
    done = a.lab("done"); nocs = a.lab("nocs"); isw1 = a.lab("isw1"); csgo = a.lab("csgo")
    a.e(f".globl {name}\n.p2align 8\n.type {name},@function\n{name}:")
    load_args(a, done)
    a.e(f"v_and_b32 v{VL}, 63, v0")
    srd(a, SRD_X, S_X, [], XBYTES)
    srd(a, SRD_S, S_WS, [WS_STAT[0]], STATBYTES)
    a.e(f"""s_lshl_b32 s{S_T2}, s2, 3
s_lshl_b32 s{S_T3}, s{S_WAVE}, 1
s_add_u32 s{S_T2}, s{S_T2}, s{S_T3}
s_lshl_b32 s{S_T3}, s{S_T2}, 11
v_lshlrev_b32 v1, 4, v{VL}""")
    for r in range(2):
        for hf in range(2):
            a.e(f"s_add_u32 s{S_TMP}, s{S_T3}, {r*2048 + hf*1024}\nbuffer_load_dwordx4 v[{8+(r*2+hf)*4}:{11+(r*2+hf)*4}], v1, s[{SRD_X}:{SRD_X+3}], s{S_TMP} offen")
    a.e(f"s_cmp_ge_u32 s2, 208\ns_cbranch_scc1 {nocs}")
    a.e(f"s_cmp_ge_u32 s2, 96\ns_cbranch_scc1 {isw1}")
    a.e(f"""s_mul_hi_u32 s{S_I}, s2, {(2**32 + 23)//24}
s_mul_i32 s{S_TMP}, s{S_I}, 24
s_sub_u32 s{S_J}, s2, s{S_TMP}
s_mov_b32 s{S_STRX}, 6144""")
    srd(a, SRD_W, S_WQKV, [], D*3*D*2)
    srd(a, SRD_T, S_WS, [WS_CSQ], NCP*3*D*4)
    a.e(f"s_mov_b32 s{S_NT}, {3*D*4}\ns_branch {csgo}")
    a.e(f"""{isw1}:
s_sub_u32 s{S_T5}, s2, 96
s_mul_hi_u32 s{S_I}, s{S_T5}, {(2**32 + 27)//28}
s_mul_i32 s{S_TMP}, s{S_I}, 28
s_sub_u32 s{S_J}, s{S_T5}, s{S_TMP}
s_mov_b32 s{S_STRX}, 7168""")
    srd(a, SRD_W, S_W1, [], D*F*2)
    srd(a, SRD_T, S_WS, [WS_CSW], NCP*F*4)
    a.e(f"s_mov_b32 s{S_NT}, {F*4}")
    a.e(f"{csgo}:")
    a.e(f"""v_lshrrev_b32 v2, 4, v0
v_and_b32 v3, 15, v0
s_lshl_b32 s{S_TMP}, s{S_I}, 8
v_add_u32 v4, s{S_TMP}, v2
v_mul_lo_u32 v4, v4, s{S_STRX}
v_lshl_add_u32 v4, v3, 4, v4
s_lshl_b32 s{S_TMP}, s{S_J}, 8
v_add_u32 v4, s{S_TMP}, v4
s_lshl_b32 s{S_T4}, s{S_STRX}, 4
s_mov_b32 s{S_T5}, 0""")
    for i in range(16):
        a.e(f"buffer_load_dwordx4 v[{32+4*i}:{35+4*i}], v4, s[{SRD_W}:{SRD_W+3}], s{S_T5} offen")
        if i < 15: a.e(f"s_add_u32 s{S_T5}, s{S_T5}, s{S_T4}")
    for q in range(8): a.e(f"v_mov_b32 v{100+q}, 0")
    for i in range(16):
        a.e(f"s_waitcnt vmcnt({15-i})")
        for q in range(4):
            r = 32 + 4*i + q
            a.e(f"v_lshlrev_b32 v110, 16, v{r}\nv_and_b32 v111, 0xffff0000, v{r}\nv_pk_add_f32 v[{100+2*q}:{101+2*q}], v[{100+2*q}:{101+2*q}], v[110:111]")
    a.e(f"v_lshlrev_b32 v5, 9, v2\nv_lshl_add_u32 v5, v3, 5, v5\nds_write_b128 v5, v[100:103]\nds_write_b128 v5, v[104:107] offset:16")
    a.e("s_waitcnt lgkmcnt(0)\ns_barrier")
    sk = a.lab("sk")
    a.e(f"s_cmp_ge_u32 s{S_WAVE}, 2\ns_cbranch_scc1 {sk}")
    a.e("v_lshlrev_b32 v5, 2, v0")
    for r in range(16):
        a.e(f"ds_read_b32 v{32+r}, v5 offset:{r*512}")
    a.e("s_waitcnt lgkmcnt(0)")
    for r in range(1, 16): a.e(f"v_add_f32 v32, v32, v{32+r}")
    a.e(f"""s_mul_i32 s{S_TMP}, s{S_I}, s{S_NT}
s_lshl_b32 s{S_T5}, s{S_J}, 9
s_add_u32 s{S_TMP}, s{S_TMP}, s{S_T5}
buffer_store_dword v32, v5, s[{SRD_T}:{SRD_T+3}], s{S_TMP} offen sc1
{sk}:""")
    a.e(f"{nocs}:")
    a.e("s_waitcnt vmcnt(0)")
    for r in range(2):
        for hf in range(2):
            R = 8 + (r*2+hf)*4
            a.e("v_mov_b32 v120, 0\nv_mov_b32 v121, 0\nv_mov_b32 v122, 0\nv_mov_b32 v123, 0")
            for q in range(4):
                a.e(f"v_lshlrev_b32 v110, 16, v{R+q}\nv_and_b32 v111, 0xffff0000, v{R+q}")
                a.e("v_pk_add_f32 v[120:121], v[120:121], v[110:111]\nv_pk_fma_f32 v[122:123], v[110:111], v[110:111], v[122:123]")
            a.e("v_add_f32 v120, v120, v121\nv_add_f32 v121, v122, v123\ns_nop 1")
            for dpp in ("quad_perm:[1,0,3,2]", "quad_perm:[2,3,0,1]", "row_half_mirror"):
                a.e(f"v_add_f32_dpp v120, v120, v120 {dpp} row_mask:0xf bank_mask:0xf\nv_add_f32_dpp v121, v121, v121 {dpp} row_mask:0xf bank_mask:0xf\ns_nop 1")
            a.e(f"""v_lshrrev_b32 v5, 3, v{VL}
v_lshlrev_b32 v5, 14, v5
s_add_u32 s{S_TMP}, s{S_T2}, {r}
s_lshl_b32 s{S_TMP}, s{S_TMP}, 3
s_add_u32 s{S_TMP}, s{S_TMP}, {hf*8*16384}
s_mov_b32 exec_lo, 0x01010101
s_mov_b32 exec_hi, 0x01010101
buffer_store_dwordx2 v[120:121], v5, s[{SRD_S}:{SRD_S+3}], s{S_TMP} offen sc1
s_mov_b64 exec, -1""")
    stamp(a, 5)
    if PROF: a.e("s_waitcnt vmcnt(0)")
    stamp(a, 6); stamp_rt(a, 7); stamp_flush(a, 0)
    a.e(f"{done}:\ns_endpgm")

def descriptor(name, vgpr=256, sgpr=96):
    return f""".amdhsa_kernel {name}
  .amdhsa_next_free_vgpr {vgpr}
  .amdhsa_next_free_sgpr {sgpr}
  .amdhsa_accum_offset {vgpr}
  .amdhsa_group_segment_fixed_size 0
  .amdhsa_kernarg_size 72
  .amdhsa_user_sgpr_count 2
  .amdhsa_user_sgpr_kernarg_segment_ptr 1
  .amdhsa_system_sgpr_workgroup_id_x 1
.end_amdhsa_kernel"""

HEADER = """; Kernarg layout for this problem (72 bytes, ptrs only, base s[0:1]):
;   offset  16: d_in[2] A_wo  shape=(1024, 1024) dtype=bfloat16
;   offset  64: d_ws      268435456 bytes workspace
"""

def build(nlaunch=None):
    a = Asm()
    names = []
    def K(n): return n + "_kernel"
    ldsq = 3*40960 + 4096; ldsw = 3*49152 + 4096; ldsr = 6*24576
    launches = [("prep", 256, 16384)]
    for l in range(2):
        launches += [(f"qkv{l}", 512, ldsq), (f"att{l}", 256, 24576), (f"wo{l}", 512, ldsr), (f"w1f{l}", 512, ldsw), (f"w2f{l}", 512, ldsr)]
    if nlaunch: launches = launches[:nlaunch]
    head = HEADER + "".join(f"; @launch kernel={K(n)} grid=(256,1,1) block=({b},1,1) lds={lds}\n" for n, b, lds in launches)
    a.e('.amdgcn_target "amdgcn-amd-amdhsa--gfx950"\n.text')
    kernel_prep(a, K("prep"))
    for l in range(2):
        stub_qkv(a, K(f"qkv{l}"), "B_qkv", l)
        stub_att(a, K(f"att{l}"), "B_att", l)
        stub_res(a, K(f"wo{l}"), "B_res", l, "wo")
        stub_w1(a, K(f"w1f{l}"), "B_w1", l)
        stub_res(a, K(f"w2f{l}"), "B_res", l, "w2")
    a.e(".p2align 8"); body_qkv(a, "B_qkv")
    a.e(".p2align 8"); body_att(a, "B_att")
    a.e(".p2align 8"); body_res(a, "B_res")
    a.e(".p2align 8"); body_w1(a, "B_w1")
    allk = ["prep"] + [f"{k}{l}" for l in range(2) for k in ("qkv", "att", "wo", "w1f", "w2f")]
    used = [n for n, _, _ in launches]
    desc = '.section .rodata,"a"\n' + "".join(".p2align 6\n" + descriptor(K(n)) + "\n" for n in allk)
    return head + a.text() + desc, launches

if __name__ == "__main__":
    if "--prof" in sys.argv:
        PROF = True; sys.argv.remove("--prof")
    for x in list(sys.argv):
        if x.startswith("--opt="):
            for kv in x[6:].split(","):
                k, _, v = kv.partition("="); OPT[k] = int(v) if v else 1
            sys.argv.remove(x)
    set_layout(OPT.get("base", 0) << 20, bool(OPT.get("reuse")))
    txt, launches = build()
    out = sys.argv[1] if len(sys.argv) > 1 else f"cdna_kernels/{NAME}.s"
    open(out, "w").write(txt)
    print("wrote", out, len(txt), "bytes")
```
